```python
import torch

def _softmax(x, axis=-1):
    return torch.softmax(x, dim=axis)
def _gelu(x):
    return torch.nn.functional.gelu(x, approximate="tanh")
def _silu(x):
    return torch.nn.functional.silu(x)
def _sigmoid(x):
    return torch.sigmoid(x)
def _layernorm(x, axis=-1, eps=1e-5):
    m = x.mean(dim=axis, keepdim=True)
    v = x.var(dim=axis, keepdim=True, unbiased=False)
    return (x - m) / torch.sqrt(v + eps)
def _scatter_add(tgt, idx, src, axis=0):
    return tgt.clone().index_add_(axis, idx, src)
def _segment_sum(src, seg, n):
    out = torch.zeros((n,) + src.shape[1:], dtype=src.dtype)
    return out.index_add_(0, seg, src)
def _pad(x, pw):
    flat = tuple(v for pair in reversed(pw) for v in pair)
    return torch.nn.functional.pad(x, flat)

kernel_name = 'parallel_sum__sliding_local_dilated__dense_activation_relu__prompt'

def setup_inputs():

    _w = (lambda a: (lambda t: t.to(torch.bfloat16) if t.is_floating_point() else t)(torch.as_tensor(a)))
    def _A_setup():
        B, S, D = 1, 2048, 512
        return {
            "x": _w((lambda *s: torch.randn(*s, dtype=torch.bfloat16) * 0.05)(B, S, D)),
            "wqkv": _w((lambda *s: torch.randn(*s, dtype=torch.bfloat16) * 0.05)(D, 3 * D)),
            "wo": _w((lambda *s: torch.randn(*s, dtype=torch.bfloat16) * 0.05)(D, D)),
        }
    _A_in = _A_setup()

    def _B_setup():
        B, S, D, Dff = 1, 2048, 512, 1376
        return {
            "x": _w((lambda *s: torch.randn(*s, dtype=torch.bfloat16) * 0.05)(B, S, D)),
            "w1": _w((lambda *s: torch.randn(*s, dtype=torch.bfloat16) * 0.05)(D, Dff)),
            "w2": _w((lambda *s: torch.randn(*s, dtype=torch.bfloat16) * 0.05)(Dff, D)),
        }
    _B_in = _B_setup()

    return {
        "A_x": _A_in["x"],
        "A_wqkv": _A_in["wqkv"],
        "A_wo": _A_in["wo"],
        "B_x": _B_in["x"],
        "B_w1": _B_in["w1"],
        "B_w2": _B_in["w2"],
    }

def reference(A_x, A_wqkv, A_wo, B_x, B_w1, B_w2):
    def _A_ref(x, wqkv, wo):
        B, S, D = x.shape
        H = 32; Dh = D // H
        W, dil = 8, 2
        qkv = (lambda x, *d: x.permute(*d))((x @ wqkv).reshape(B, S, 3, H, Dh), 2, 0, 3, 1, 4)
        q, k, v = qkv[0], qkv[1], qkv[2]
        scale = Dh ** -0.5
        pos = torch.arange(S)
        off = torch.arange(W) * dil
        idx = pos[:, None] - off[None, :]
        mask = idx >= 0
        idx_c = torch.where(mask, idx, 0).reshape(-1)
        kg = k[:, :, idx_c, :].reshape(B, H, S, W, Dh)
        vg = v[:, :, idx_c, :].reshape(B, H, S, W, Dh)
        logits = torch.einsum("bhsd,bhswd->bhsw", q, kg) * scale
        logits = torch.where(mask[None, None, :, :], logits, -1e9)
        attn = _softmax(logits, axis=-1)
        o = torch.einsum("bhsw,bhswd->bhsd", attn, vg)
        return (lambda x, *d: x.permute(*d))(o, 0, 2, 1, 3).reshape(B, S, D) @ wo

    def _B_ref(x, w1, w2):
        h = torch.einsum("bsd,df->bsf", x, w1)
        zero = torch.zeros_like(h)
        h = torch.maximum(h, zero)
        return torch.einsum("bsf,fd->bsd", h, w2)

    x = A_x
    xn = _layernorm(x, axis=-1)
    return x + _A_ref(xn, A_wqkv, A_wo) + _B_ref(xn, B_w1, B_w2)
```

```python
import re

REG_RE = re.compile(r"^(-?\|?)([vas])(\d+)\|?$")
RNG_RE = re.compile(r"^(-?\|?)([vas])\[(\d+):(\d+)\]\|?$")

TRANS = ("v_exp_f32", "v_log_f32", "v_rcp_f32", "v_rsq_f32", "v_sqrt_f32", "v_sin_f32", "v_cos_f32")


def regs_of(tok):
    tok = tok.strip()
    m = REG_RE.match(tok)
    if m:
        return [(m.group(2), int(m.group(3)))]
    m = RNG_RE.match(tok)
    if m:
        return [(m.group(2), i) for i in range(int(m.group(3)), int(m.group(4)) + 1)]
    if tok in ("vcc", "vcc_lo", "vcc_hi"):
        return [("s", "vcc")]
    if tok in ("exec", "exec_lo", "exec_hi"):
        return [("s", "exec")]
    if tok == "m0":
        return [("s", "m0")]
    return []


def split_ops(s):
    out, depth, cur = [], 0, ""
    for ch in s:
        if ch == "[":
            depth += 1
        if ch == "]":
            depth -= 1
        if ch == "," and depth == 0:
            out.append(cur.strip())
            cur = ""
        else:
            cur += ch
    if cur.strip():
        out.append(cur.strip())
    return out


class Ins:
    __slots__ = ("text", "op", "kind", "w", "r", "info", "label", "target", "mods")

    def __init__(self, text):
        self.text = text
        self.label = None
        self.target = None
        self.w = []
        self.r = []
        self.info = {}
        self.kind = "other"
        t = text.split(";")[0].strip()
        if t.endswith(":"):
            self.label = t[:-1]
            self.kind = "label"
            self.op = ""
            return
        if t.startswith(".") or not t:
            self.kind = "directive"
            self.op = ""
            return
        parts = t.split(None, 1)
        op = parts[0]
        self.op = op
        rest = parts[1] if len(parts) > 1 else ""
        ops = split_ops(rest)
        mods = []
        if ops:
            last = ops[-1].split()
            ops[-1] = last[0]
            mods = last[1:]
        self.mods = mods
        R = lambda i: regs_of(ops[i]) if i < len(ops) else []
        base = re.sub(r"_(e32|e64|dpp|sdwa)$", "", op)
        if op.startswith("v_mfma"):
            self.kind = "mfma"
            self.w = R(0)
            self.info["A"] = R(1)
            self.info["B"] = R(2)
            self.info["C"] = R(3)
            self.r = R(1) + R(2) + R(3)
            self.info["passes"] = 8 if "32x32" in op else 4
        elif op.startswith("v_"):
            self.kind = "valu"
            if base.startswith("v_permlane") and "swap" in base:
                self.info["perm"] = True
                self.w = R(0) + R(1)
                self.r = R(0) + R(1)
            elif base.startswith("v_cmp"):
                self.w = R(0)
                self.r = sum((R(i) for i in range(1, len(ops))), [])
            elif base in ("v_readfirstlane_b32", "v_readlane_b32"):
                self.info["readlane"] = True
                self.w = R(0)
                self.r = sum((R(i) for i in range(1, len(ops))), [])
            else:
                self.w = R(0)
                self.r = sum((R(i) for i in range(1, len(ops))), [])
                if base in ("v_fmac_f32", "v_mac_f32", "v_dot2c_f32_bf16", "v_writelane_b32", "v_fmamk_f32_x"):
                    self.r += R(0)
                if base == "v_cndmask_b32" and len(ops) == 3:
                    self.r += [("s", "vcc")]
            if base in TRANS:
                self.info["trans"] = True
            if base.startswith("v_dot2"):
                self.info["dot"] = base
                self.info["dotC"] = R(0) if base.startswith("v_dot2c") else R(3)
                self.info["dotAB"] = R(1) + R(2)
            if op.endswith("_dpp") or any(m.startswith(("row_", "quad_perm", "wave_")) for m in mods):
                self.info["dpp"] = True
                self.r += R(0) if False else []
            if op.endswith("_sdwa") or any(m.startswith("op_sel:") for m in mods):
                self.info["opsel"] = True
        elif op.startswith("ds_"):
            self.kind = "ds"
            if op.startswith("ds_read") or op.startswith("ds_bpermute") or op.startswith("ds_swizzle"):
                self.w = R(0)
                self.r = sum((R(i) for i in range(1, len(ops))), [])
            else:
                self.r = sum((R(i) for i in range(0, len(ops))), [])
        elif op.startswith("buffer_"):
            self.kind = "vmem"
            if "lds" in mods:
                self.info["ldsdma"] = True
                self.r = sum((R(i) for i in range(0, len(ops))), []) + [("s", "m0")]
            elif op.startswith("buffer_load"):
                self.w = R(0)
                self.r = sum((R(i) for i in range(1, len(ops))), [])
            else:
                self.r = sum((R(i) for i in range(0, len(ops))), [])
                if op.endswith(("x3", "x4")):
                    self.info["wide_store"] = R(0)
        elif op.startswith("global_"):
            self.kind = "vmem"
            if op.startswith("global_load_lds"):
                self.info["ldsdma"] = True
                self.r = sum((R(i) for i in range(0, len(ops))), []) + [("s", "m0")]
            elif op.startswith("global_load"):
                self.w = R(0)
                self.r = sum((R(i) for i in range(1, len(ops))), [])
            else:
                self.r = sum((R(i) for i in range(0, len(ops))), [])
                if op.endswith(("x3", "x4")):
                    self.info["wide_store"] = R(1)
        elif op.startswith("s_"):
            if op == "s_nop":
                self.kind = "nop"
                self.info["n"] = int(ops[0], 0) + 1
            elif op in ("s_branch",) or op.startswith("s_cbranch"):
                self.kind = "branch"
                self.target = ops[0]
                self.info["uncond"] = op == "s_branch"
            elif op == "s_endpgm":
                self.kind = "end"
            elif op.startswith(("s_waitcnt", "s_barrier", "s_setprio", "s_sleep")):
                self.kind = "sctl"
            elif op.startswith(("s_load", "s_memtime", "s_memrealtime")):
                self.kind = "smem"
                self.w = R(0)
                self.r = sum((R(i) for i in range(1, len(ops))), [])
            elif op.startswith("s_cmp") or op.startswith("s_bitcmp"):
                self.kind = "salu"
                self.r = sum((R(i) for i in range(0, len(ops))), [])
            else:
                self.kind = "salu"
                self.w = R(0)
                self.r = sum((R(i) for i in range(1, len(ops))), [])
                if "saveexec" in op:
                    self.w += [("s", "exec")]
        else:
            raise ValueError("unknown instruction: " + text)


MAXAGE = 22


def isvec(r):
    return r[0] in ("v", "a")


def need_states(ins, st):
    need = 0
    why = None

    def req(key, n, msg):
        nonlocal need, why
        if key in st and st[key] < n and n - st[key] > need:
            need = n - st[key]
            why = msg

    k = ins.kind
    if k == "mfma":
        P = ins.info["passes"]
        for r in ins.r:
            req(("valu_w", r), 2, "valu->mfma")
            req(("trans_w", r), 2, "trans->mfma")
            req(("dot_w", r), 3, "dot->mfma")
        for r in ins.info["A"] + ins.info["B"]:
            req(("mfma4_w", r), 8, "mfma4->AB")
            req(("mfma8_w", r), 12, "mfma8->AB")
        C = ins.info["C"]
        for r in C:
            for (ev, n) in (("mfma4_w", 6), ("mfma8_w", 10)):
                key = (ev, r)
                if key in st:
                    sig = st.get(("sig", r))
                    exact = ("sigeq", r) in st and False
                    prod = st.get(("prod", r))
                    if prod == (P, C[0], len(C)):
                        continue
                    req(key, n, "mfma->C overlap")
        for r in ins.w:
            req(("wstore", r), 1, "store data WAR (mfma)")
        for r in ins.w:
            if r in C:
                continue
            req(("mfma4_w", r), 8, "mfma->mfma WAW")
            req(("mfma8_w", r), 12, "mfma->mfma WAW")
    elif k == "valu":
        for r in ins.r + ins.w:
            if isvec(r):
                req(("mfma4_w", r), 8, "mfma4->valu")
                req(("mfma8_w", r), 12, "mfma8->valu")
        for r in ins.w:
            if isvec(r):
                req(("mfmaC4_r", r), 3, "mfmaC WAR")
                req(("mfmaC8_r", r), 7, "mfmaC WAR")
                req(("wstore", r), 2, "store data WAR")
                if not (ins.info.get("dot") and st.get(("dotop", r)) == ins.info["dot"]):
                    req(("dot_w", r), 3, "dot WAW")
        for r in ins.r:
            if isvec(r):
                if not ins.info.get("trans"):
                    req(("trans_w", r), 1, "trans->valu")
                else:
                    req(("trans_w", r), 1, "trans->trans")
                if ins.info.get("dpp") or ins.info.get("perm"):
                    req(("valu_w", r), 2, "valu->dpp/perm")
                    req(("trans_w", r), 2, "valu->dpp/perm")
                if ins.info.get("readlane"):
                    req(("valu_w", r), 1, "valu->readlane")
                    req(("trans_w", r), 1, "valu->readlane")
                req(("opsel_w", r), 1, "opsel->valu")
                if not (ins.info.get("dot") and st.get(("dotop", r)) == ins.info["dot"] and r in ins.info["dotC"] and r not in ins.info["dotAB"]):
                    req(("dot_w", r), 3, "dot->valu")
            else:
                req(("valu_sw", r), 4 if ins.info.get("readlane") else 2, "valu sgpr->valu const")
        if ins.info.get("dpp"):
            for r in ins.w:
                req(("valu_w", r), 2, "valu->dpp old")
    elif k in ("vmem", "ds"):
        for r in ins.r + ins.w:
            if isvec(r):
                req(("mfma4_w", r), 8, "mfma4->mem")
                req(("mfma8_w", r), 12, "mfma8->mem")
                if r in ins.r:
                    req(("dot_w", r), 3, "dot->mem")
                    req(("trans_w", r), 1, "trans->mem")
        for r in ins.w:
            if isvec(r):
                req(("wstore", r), 1, "store data WAR (load)")
                req(("mfmaC4_r", r), 3, "mfmaC WAR (load)")
                req(("mfmaC8_r", r), 7, "mfmaC WAR (load)")
        if k == "vmem":
            for r in ins.r:
                if not isvec(r):
                    req(("valu_sw", r), 5, "valu sgpr->vmem")
            if ins.info.get("ldsdma"):
                req(("salu_m0", ("s", "m0")), 1, "m0->ldsdma")
    elif k in ("salu", "smem", "branch"):
        for r in ins.r:
            req(("valu_sw", r), 1, "valu sgpr->salu (pad)")
        if k == "branch" and "vcc" in ins.op:
            req(("valu_sw", ("s", "vcc")), 5, "vcc->branch")
    return need, why


def step(ins, st):
    n = ins.info.get("n", 1) if ins.kind == "nop" else 1
    if ins.kind in ("label", "directive"):
        return st
    new = {}
    for key, age in st.items():
        if key[0] in ("prod", "dotop"):
            new[key] = age
        else:
            a = age + n
            if a < MAXAGE:
                new[key] = a
    st = new
    k = ins.kind

    def clear(r):
        for ev in ("valu_w", "trans_w", "mfma4_w", "mfma8_w", "dot_w", "opsel_w", "prod", "dotop"):
            st.pop((ev, r), None)

    if k == "mfma":
        P = ins.info["passes"]
        for r in ins.w:
            clear(r)
            st[("mfma%d_w" % P, r)] = 0
            st[("prod", r)] = (P, ins.w[0], len(ins.w))
        for r in ins.info["C"]:
            st[("mfmaC%d_r" % P, r)] = 0
    elif k == "valu":
        for r in ins.w:
            if isvec(r):
                clear(r)
                if ins.info.get("trans"):
                    st[("trans_w", r)] = 0
                elif ins.info.get("dot"):
                    st[("dot_w", r)] = 0
                    st[("dotop", r)] = ins.info["dot"]
                    st[("valu_w", r)] = 0
                else:
                    st[("valu_w", r)] = 0
                if ins.info.get("opsel"):
                    st[("opsel_w", r)] = 0
            else:
                st[("valu_sw", r)] = 0
    elif k in ("vmem", "ds"):
        for r in ins.w:
            clear(r)
        ws = ins.info.get("wide_store")
        if ws:
            for r in ws:
                st[("wstore", r)] = 0
        if k == "ds" and ins.op.startswith("ds_write_b128"):
            pass
    elif k in ("salu", "smem"):
        for r in ins.w:
            st.pop(("valu_sw", r), None)
            if r == ("s", "m0"):
                st[("salu_m0", r)] = 0
    for key in [x for x in st if x[0] == "prod"]:
        r = key[1]
        if ("mfma4_w", r) not in st and ("mfma8_w", r) not in st:
            del st[key]
    for key in [x for x in st if x[0] == "dotop"]:
        if ("dot_w", key[1]) not in st:
            del st[key]
    return st


def merge(a, b):
    if a is None:
        return dict(b)
    out = dict(a)
    for key, v in b.items():
        if key[0] in ("prod", "dotop"):
            if key in out and out[key] != v:
                out[key] = ("mixed",)
            elif key not in out:
                out[key] = v
        else:
            out[key] = min(out[key], v) if key in out else v
    return out


def fix_hazards(lines, verbose=False):
    total = 0
    for _ in range(200):
        ins = [Ins(l) for l in lines]
        labels = {x.label: i for i, x in enumerate(ins) if x.label}
        n = len(ins)
        state_in = [None] * (n + 1)
        state_in[0] = {}
        work = [0]
        while work:
            i = work.pop()
            st = state_in[i]
            while i < n:
                x = ins[i]
                st = step(x, dict(st))
                nxt = []
                if x.kind == "end":
                    break
                if x.kind == "branch":
                    if x.target in labels:
                        t = labels[x.target]
                        m = merge(state_in[t], st)
                        if m != state_in[t]:
                            state_in[t] = m
                            work.append(t)
                    if x.info["uncond"]:
                        break
                i += 1
                m = merge(state_in[i], st)
                if m == state_in[i]:
                    break
                state_in[i] = m
                st = m
        inserts = []
        for i, x in enumerate(ins):
            if state_in[i] is None or x.kind in ("label", "directive", "nop"):
                continue
            need, why = need_states(x, state_in[i])
            if need > 0:
                inserts.append((i, need, why))
        if not inserts:
            if verbose:
                print("hazard nops inserted:", total)
            return lines
        last = -100
        out = []
        ins_map = {}
        for (i, need, why) in inserts:
            if i - last > 24:
                ins_map[i] = (need, why)
                last = i
        for i, l in enumerate(lines):
            if i in ins_map:
                need, why = ins_map[i]
                total += 1
                while need > 0:
                    c = min(need, 16)
                    out.append(f"  s_nop {c-1}")
                    need -= c
            out.append(l)
        lines = out
    raise RuntimeError("hazard fixer did not converge")


class Em:
    def __init__(self):
        self.lines = []
        self.vmq = []
        self.lgq = []

    def __call__(self, s):
        for l in s.split("\n"):
            l = l.strip()
            if not l or l.startswith(";"):
                continue
            self.lines.append(l if l.endswith(":") else "  " + l)

    def vm(self, s, tag=None):
        self(s)
        self.vmq.append(tag)

    def lg(self, s, tag=None):
        self(s)
        self.lgq.append(tag)

    def vm_need(self, tags):
        if isinstance(tags, str) or isinstance(tags, tuple):
            tags = [tags]
        last = -1
        for i, t in enumerate(self.vmq):
            if t in tags:
                last = i
        if last < 0:
            return None
        return len(self.vmq) - 1 - last

    def wait_vm(self, tags, extra=""):
        n = self.vm_need(tags)
        if n is None:
            return
        n = min(n, 63)
        self(f"s_waitcnt vmcnt({n})")
        self.vmq = self.vmq[len(self.vmq) - n:] if n else []

    def wait_vm_all(self):
        self("s_waitcnt vmcnt(0)")
        self.vmq = []

    def lg_need(self, tags):
        if isinstance(tags, str) or isinstance(tags, tuple):
            tags = [tags]
        last = -1
        for i, t in enumerate(self.lgq):
            if t in tags:
                last = i
        if last < 0:
            return None
        return len(self.lgq) - 1 - last

    def wait_lg(self, tags):
        n = self.lg_need(tags)
        if n is None:
            return
        n = min(n, 15)
        self(f"s_waitcnt lgkmcnt({n})")
        self.lgq = self.lgq[len(self.lgq) - n:] if n else []

    def wait_lg_all(self):
        self("s_waitcnt lgkmcnt(0)")
        self.lgq = []

    def text(self):
        return "\n".join(self.lines) + "\n"
```

```python
import sys
from asmgen import Em, fix_hazards

KNAME = "parallel_sum__sliding_local_dilated__dense_activation_relu__prompt_kernel"

WS_E = 0x0
WS_FLAG = 0x1000
WS_B2FLAG = 0x2000
WS_ROW = 0x10000
NCOL = 2944
WS_COL = 0x20000
WS_B2T = 0x40000
B2S = 120
WS_ACT = 0x300000
NSTEP = 118
WS_DBG = 0x1000000
OOB = 0x7FFFFF00

LOG2E = 1.4426950408889634

SRD_X, SRD_W, SRD_WS, SRD_OUT, SRD_AUX = "s[4:7]", "s[8:11]", "s[12:15]", "s[16:19]", "s[20:23]"
sW = "s3"
sXCD, sIDX = "s40", "s41"
sRT, sCT, sK0, sP, sCH = "s42", "s43", "s44", "s45", "s46"
sIT, sCUR, sDELTA, sFILL = "s47", "s48", "s49", "s50"
sKX, sKW, sKW8, sMX, sMW = "s51", "s52", "s53", "s54", "s55"
sT, sNT, sSPIN, sJ2, sN2 = "s56", "s57", "s58", "s59", "s60"
sA, sB, sC, sD = "s61", "s96", "s97", "s98"
sE, sF = "s99", "s100"
sM = "s[62:63]"
sM2 = "s[30:31]"
sG = "s101"
SRD_W2 = "s[92:95]"
sAH, sAO, sX20, sX21 = "s47", "s48", "s49", "s50"
SPIN_MAX = 1 << 18

ACC = 0
XF = 112
WF = 128
VXA = 160
VXA1 = 164
VWA = 168
VWA2 = 169
VXD = 170
VWD = 174
GROW = 182
GCOL = 190
VFLAG = 206
VLANE16 = 208
VL = 209
VE = 210
VGRA = 211
VGCA = 213
VGCA2 = 214
VB2FA = 215
BIASC = 216
BIASP = 220
MASKC = 224
ONES = 226
VOST = 230
VRVW = 232
VRVR = 233
VFA = 234
VFO = 235
VRES = 236
VRS2 = 237
VFST = 238
VA1 = 239
VA0 = 181
RES = 240
G2 = 248
VT0 = 252
LDS_RV = 122880
AUX_CS = 81920
AUX_B2 = AUX_CS + 32768
RING = 64
RING_D = 10


def hexf(x):
    import struct
    return "0x%08x" % struct.unpack("<I", struct.pack("<f", x))[0]


class Cfg:
    def __init__(self, **kw):
        self.stamps = False
        self.stop = None
        self.dma_slots = None
        self.b2_it6 = 12
        self.b2_it7 = 12
        self.__dict__.update(kw)


class Gen:
    def __init__(self, cfg):
        self.cfg = cfg
        self.e = Em()
        self.nstamp = 0
        self.uid = 0

    def lab(self, name):
        self.uid += 1
        return f"L_{name}_{self.uid}"

    def stamp(self, k):
        if not self.cfg.stamps:
            return
        e = self.e
        assert k < 12
        e(f"s_memtime s[{64+2*k}:{65+2*k}]")
        e("s_waitcnt lgkmcnt(0)")
        e.lgq = []

    def dump_stamps(self):
        if not self.cfg.stamps:
            return
        e = self.e
        e(f"s_lshl_b32 {sA}, s2, 2")
        e(f"s_add_u32 {sA}, {sA}, {sW}")
        e(f"s_lshl_b32 {sA}, {sA}, 6")
        e(f"s_add_u32 {sA}, {sA}, {WS_DBG}")
        for k in range(0, 12, 4):
            for i in range(4):
                e(f"v_mov_b32 v{i}, s{64+2*(k+i)}")
            e(f"v_mov_b32 v4, {k*4}")
            e(f"buffer_store_dwordx4 v[0:3], v4, {SRD_WS}, {sA} offen")
            e("s_waitcnt vmcnt(0)")

    def entry(self):
        e = self.e
        e(f"""
        s_cmp_ge_u32 s2, 256
        s_cbranch_scc1 L_end
        s_load_dwordx4 s[24:27], s[0:1], 0
        s_load_dwordx2 s[38:39], s[0:1], 64
        s_load_dwordx4 s[32:35], s[0:1], 32
        s_load_dwordx2 s[28:29], s[0:1], 16
        s_load_dwordx2 s[36:37], s[0:1], 48
        v_lshrrev_b32 v1, 6, v0
        v_and_b32 v{VL}, 63, v0
        s_and_b32 {sXCD}, s2, 7
        v_readfirstlane_b32 {sW}, v1
        s_lshr_b32 {sIDX}, s2, 3
        v_lshlrev_b32 v{VLANE16}, 4, v{VL}
        s_and_b32 {sP}, {sW}, 1
        s_lshr_b32 {sCH}, {sW}, 1
        """)
        self.stamp_now = True
        e(f"""
        s_lshr_b32 {sA}, {sIDX}, 3
        s_lshl_b32 {sJ2}, {sXCD}, 2
        s_add_u32 {sJ2}, {sJ2}, {sA}
        s_and_b32 {sN2}, {sIDX}, 7
        """)
        e(f"""
        s_and_b32 {sA}, {sXCD}, 1
        s_lshr_b32 {sB}, {sXCD}, 1
        s_cmp_lt_u32 {sIDX}, 18
        s_cbranch_scc0 L_ffn_decode
        s_cmp_ge_u32 {sIDX}, 9
        s_cselect_b32 {sC}, 9, 0
        s_cselect_b32 {sD}, 1, 0
        s_sub_u32 {sRT}, {sIDX}, {sC}
        s_mul_i32 {sA}, {sA}, 9
        s_add_u32 {sRT}, {sRT}, {sA}
        s_lshl_b32 {sCT}, {sB}, 1
        s_add_u32 {sCT}, {sCT}, {sD}
        s_mul_i32 {sK0}, {sRT}, 57
        s_branch L_att
        L_ffn_decode:
        s_sub_u32 {sC}, {sIDX}, 18
        s_mul_i32 {sB}, {sB}, 14
        s_add_u32 {sC}, {sC}, {sB}
        s_lshr_b32 {sCT}, {sC}, 3
        s_and_b32 {sC}, {sC}, 7
        s_lshl_b32 {sA}, {sA}, 3
        s_add_u32 {sRT}, {sA}, {sC}
        s_lshl_b32 {sK0}, {sRT}, 6
        s_cmp_eq_u32 {sCT}, 6
        s_cbranch_scc1 L_wide
        s_branch L_ffn
        """)

    def srds(self, role):
        e = self.e
        wlo, whi, wn = ("s26", "s27", 512 * 3072) if role == "att" else ("s32", "s33", 512 * 2752)
        e("s_waitcnt lgkmcnt(0)")
        e(f"""
        s_mov_b32 s4, s24
        s_and_b32 s5, s25, 0xffff
        s_mov_b32 s6, {2048*1024}
        s_mov_b32 s7, 0x00020000
        s_mov_b32 s8, {wlo}
        s_and_b32 s9, {whi}, 0xffff
        s_mov_b32 s10, {wn}
        s_mov_b32 s11, 0x00020000
        s_mov_b32 s12, s38
        s_and_b32 s13, s39, 0xffff
        s_mov_b32 s14, 0x10000000
        s_mov_b32 s15, 0x00020000
        s_mov_b32 s16, s36
        s_and_b32 s17, s37, 0xffff
        s_mov_b32 s18, {2048*1024}
        s_mov_b32 s19, 0x00020000
        """)

    def p1_params(self, role):
        if role == "wide":
            return dict(RS=448, RB=2752, NW=7, STG=45056, NB=4)
        return dict(RS=384, RB=3072 if role == "att" else 2752, NW=6, STG=40960, NB=3)

    def p1_addr(self, role):
        e = self.e
        P = self.p1_params(role)
        RS, RB = P["RS"], P["RB"]
        L = f"v{VL}"
        e(f"""
        s_lshl_b32 {sA}, {sK0}, 1
        s_add_u32 {sA}, {sA}, {sCH}
        s_lshl_b32 {sB}, {sP}, 6
        s_add_u32 {sA}, {sA}, {sB}
        s_lshl_b32 {sA}, {sA}, 10
        v_lshrrev_b32 v1, 3, {L}
        v_lshrrev_b32 v2, 4, {L}
        v_and_b32 v3, 7, {L}
        v_xor_b32 v3, v3, v2
        v_lshlrev_b32 v1, 11, v1
        v_add_u32 v1, {sA}, v1
        v_lshl_add_u32 v{VXD}, v3, 4, v1
        v_xor_b32 v3, 4, v3
        v_lshl_add_u32 v{VXD+1}, v3, 4, v1
        v_add_u32 v{VXD+1}, 0x4000, v{VXD+1}
        v_add_u32 v{VXD+2}, 0x8000, v{VXD}
        v_add_u32 v{VXD+3}, 0x8000, v{VXD+1}
        """)
        if role == "wide":
            e(f"s_mul_i32 {sB}, {sW}, {16*RB}")
            e(f"s_add_u32 {sB}, {sB}, {2*1152}")
            for j in range(7):
                e(f"""
                v_add_u32 v1, {64*j}, {L}
                v_mul_u32_u24 v2, 293, v1
                v_lshrrev_b32 v2, 13, v2
                v_mul_u32_u24 v3, 28, v2
                v_sub_u32 v1, v1, v3
                v_mul_u32_u24 v2, {RB}, v2
                v_lshl_add_u32 v1, v1, 4, v2
                v_add_u32 v{VWD+j}, {sB}, v1
                """)
        else:
            e(f"s_mul_i32 {sB}, {sW}, {16*RB}")
            e(f"s_mul_i32 {sC}, {sCT}, {128 if role == 'att' else 384}")
            e(f"s_add_u32 {sB}, {sB}, {sC}")
            for j in range(3):
                e(f"""
                v_add_u32 v1, {64*j}, {L}
                v_mul_u32_u24 v2, 171, v1
                v_lshrrev_b32 v2, 12, v2
                v_mul_u32_u24 v3, 24, v2
                v_sub_u32 v1, v1, v3
                v_lshrrev_b32 v3, 2, v1
                v_bfe_u32 v4, v2, 1, 1
                v_xor_b32 v3, v3, v4
                v_and_b32 v1, 3, v1
                v_mul_u32_u24 v2, {RB}, v2
                v_lshl_add_u32 v1, v1, 4, v2
                """)
                if role == "att":
                    e(f"""
                    v_lshrrev_b32 v4, 1, v3
                    v_and_b32 v3, 1, v3
                    v_lshl_add_u32 v1, v4, 10, v1
                    """)
                e(f"""
                v_lshl_add_u32 v1, v3, 6, v1
                v_add_u32 v{VWD+j}, {sB}, v1
                """)
        e(f"""
        v_and_b32 v1, 31, {L}
        s_lshl_b32 {sA}, {sP}, 6
        v_add_u32 v1, {sA}, v1
        v_lshlrev_b32 v1, 7, v1
        v_bfe_u32 v2, {L}, 1, 3
        v_lshrrev_b32 v3, 5, {L}
        v_xor_b32 v2, v2, v3
        """)
        if role == "wide":
            e(f"s_lshl_b32 {sA}, {sCH}, 12")
            e(f"v_add_u32 v5, {sA}, v1")
            e(f"s_xor_b32 {sA}, {sA}, 0x1000")
            e(f"v_add_u32 v6, {sA}, v1")
        for s in range(4):
            e(f"v_xor_b32 v4, {2*s}, v2")
            if role == "wide":
                e(f"v_lshl_add_u32 v{VXA+s}, v4, 4, v5")
                e(f"v_lshl_add_u32 v{VXA1+s}, v4, 4, v6")
            else:
                e(f"v_lshl_add_u32 v{VXA+s}, v4, 4, v1")
        e(f"""
        v_bfe_u32 v1, {L}, 2, 2
        v_lshrrev_b32 v2, 5, {L}
        v_lshl_add_u32 v1, v2, 3, v1
        v_mul_u32_u24 v1, {RS}, v1
        v_bfe_u32 v2, {L}, 4, 1
        v_lshl_add_u32 v1, v2, 5, v1
        v_and_b32 v2, 3, {L}
        v_lshl_add_u32 v1, v2, 3, v1
        v_add_u32 v1, 0x4000, v1
        """)
        if role == "wide":
            e(f"""
            s_lshl_b32 {sA}, {sCH}, 6
            v_add_u32 v{VWA}, {sA}, v1
            v_add_u32 v{VWA2}, {6*64}, v1
            """)
        else:
            e(f"""
            v_bfe_u32 v2, {L}, 3, 1
            v_xor_b32 v2, {sCH}, v2
            v_lshl_add_u32 v{VWA}, v2, 6, v1
            """)

    def dma_list(self, role):
        P = self.p1_params(role)
        out = []
        for j in range(4):
            out.append((f"s_add_u32 m0, {sMX}, {1024*j}",
                        f"buffer_load_dwordx4 v{VXD+j}, {SRD_X}, {sKX} offen lds"))
        for j in range(P["NW"]):
            if role == "wide":
                va, so = VWD + j, sKW
            else:
                va, so = VWD + (j % 3), (sKW if j < 3 else sKW8)
            out.append((f"s_add_u32 m0, {sMW}, {1024*j}",
                        f"buffer_load_dwordx4 v{va}, {SRD_W}, {so} offen lds"))
        return out

    def set_fill(self, role, stage_reg=None, stage_imm=None):
        e = self.e
        P = self.p1_params(role)
        if stage_reg is None:
            e(f"s_mov_b32 {sFILL}, {stage_imm}")
            stage_reg = sFILL
        e(f"s_lshl_b32 {sA}, {sW}, 12")
        e(f"s_add_u32 {sMX}, {stage_reg}, {sA}")
        e(f"s_mul_i32 {sA}, {sW}, {1024*P['NW']}")
        e(f"s_add_u32 {sA}, {sA}, 0x4000")
        e(f"s_add_u32 {sMW}, {stage_reg}, {sA}")

    def set_koff(self, role, kc):
        e = self.e
        P = self.p1_params(role)
        e(f"s_mov_b32 {sKX}, {kc*128}")
        e(f"s_mov_b32 {sKW}, {kc*64*P['RB']}")
        e(f"s_mov_b32 {sKW8}, {(kc*64+8)*P['RB']}")

    def issue_chunk_now(self, role, lo, hi, tag):
        e = self.e
        for (a, b) in self.dma_list(role)[lo:hi]:
            e(a)
            e("s_nop 0")
            e.vm(b, tag)

    def xf(self, buf, tb):
        r = XF + buf * 8 + tb * 4
        return f"v[{r}:{r+3}]"

    def wf(self, buf, blk):
        r = WF + buf * 16 + blk * 4
        return r

    def reads(self, role, s, buf):
        P = self.p1_params(role)
        RS = P["RS"]
        out = []
        if role == "wide":
            x0 = f"ds_read_b128 {self.xf(buf,0)}, v{VXA+s}"
            x1 = f"ds_read_b128 {self.xf(buf,1)}, v{VXA1+s}"
        else:
            x0 = f"ds_read_b128 {self.xf(buf,0)}, v{VXA+s}"
            x1 = f"ds_read_b128 {self.xf(buf,1)}, v{VXA+s} offset:4096"
        out.append((x0, ("x", buf, 0)))

        def wr(blk, addr, col):
            r = self.wf(buf, blk)
            for ii in range(2):
                off = (16 * s + 4 * ii) * RS + col
                out.append((f"ds_read_b64_tr_b16 v[{r+2*ii}:{r+2*ii+1}], v{addr} offset:{off}", ("w", buf, blk)))
        for blk in range(3):
            wr(blk, VWA, blk * 128)
        if role == "wide":
            wr(3, VWA2, 0)
        out.append((x1, ("x", buf, 1)))
        return out

    def acc(self, tb, blk):
        if blk == 3:
            r = 96
        else:
            r = blk * 32 + tb * 16
        return r

    def mfmas(self, role, buf):
        out = []
        order = [(0, 0), (0, 1), (0, 2)]
        if role == "wide":
            order.append((0, 3))
        order += [(1, 0), (1, 1), (1, 2)]
        for (tb, blk) in order:
            a = self.acc(tb, blk)
            w = self.wf(buf, blk)
            W = f"v[{w}:{w+3}]"
            X = self.xf(buf, tb)
            if role == "att" and blk == 2:
                t = f"v_mfma_f32_32x32x16_bf16 v[{a}:{a+15}], {X}, {W}, v[{a}:{a+15}]"
            else:
                t = f"v_mfma_f32_32x32x16_bf16 v[{a}:{a+15}], {W}, {X}, v[{a}:{a+15}]"
            out.append((t, [("x", buf, tb), ("w", buf, blk)]))
        return out

    def emit_step(self, role, buf, fillers):
        e = self.e
        for k, (t, need) in enumerate(self.mfmas(role, buf)):
            e.wait_lg(need)
            e(t)
            for (kind, text, tag) in (fillers[k] if k < len(fillers) else []):
                if kind == "lg":
                    e.lg(text, tag)
                elif kind == "vm":
                    e.vm(text, tag)
                else:
                    e(text)

    def step_fillers(self, role, rd, dmas, extra=None, first_slot=None):
        n = 7 if role == "wide" else 6
        F = [[] for _ in range(n)]
        k = 0
        for i, (t, tag) in enumerate(rd):
            F[min(i // 2, n - 1)].append(("lg", t, tag))
        nd = len(dmas)
        if nd:
            slots = {1: [4], 2: [2, 4], 3: [1, 3, 5], 4: [1, 2, 4, 5]}[nd] if first_slot is None else first_slot
            for (m0op, ld), k in zip(dmas, slots):
                if m0op:
                    F[k - 1].append(("op", m0op, None))
                F[k].insert(0, ("vm", ld[0], ld[1]))
        for (k, item) in (extra or []):
            F[k].append(item)
        return F

    def adv_addr(self, role, which):
        out = []
        for s in which.get("x", []):
            out.append(("op", f"v_add_u32 v{VXA+s}, {sDELTA}, v{VXA+s}", None))
            if role == "wide":
                out.append(("op", f"v_add_u32 v{VXA1+s}, {sDELTA}, v{VXA1+s}", None))
        if which.get("w"):
            out.append(("op", f"v_add_u32 v{VWA}, {sDELTA}, v{VWA}", None))
            if role == "wide":
                out.append(("op", f"v_add_u32 v{VWA2}, {sDELTA}, v{VWA2}", None))
        return out

    def iteration(self, role, dma, last=False, hooks=None, vm_extra=None):
        e = self.e
        P = self.p1_params(role)
        STG = P["STG"]
        hooks = hooks or {}
        dl = self.dma_list(role) if dma else []
        nd = len(dl)
        rest = dl[3:]
        per = [rest[0:2], rest[2:4], rest[4:]] if dma else [[], [], []]
        e(f"s_add_u32 {sA}, {sCUR}, {STG}")
        e(f"s_cmp_eq_u32 {sA}, {3*STG}")
        e(f"s_cselect_b32 {sA}, 0, {sA}")
        e(f"s_sub_u32 {sDELTA}, {sA}, {sCUR}")
        e(f"s_mov_b32 {sCUR}, {sA}")
        if "top" in hooks:
            hooks["top"]()
        for s in range(3):
            rd = self.reads(role, s + 1, (s + 1) & 1)
            dm = [(a, (b, "c2")) for (a, b) in per[s]]
            if vm_extra and s in vm_extra:
                dm = dm + vm_extra[s]
            extra = []
            lastslot = (6 if role == "wide" else 5)
            if s == 0:
                extra += [(lastslot, x) for x in self.adv_addr(role, {"x": [1]})] if not last else []
                if not last:
                    extra += [(lastslot, x) for x in self.adv_addr(role, {"x": [0]})]
            if s == 1 and not last:
                extra += [(lastslot, x) for x in self.adv_addr(role, {"x": [2]})]
            if s == 2 and not last:
                extra += [(lastslot, x) for x in self.adv_addr(role, {"x": [3], "w": True})]
            F = self.step_fillers(role, rd, dm, extra)
            self.emit_step(role, s & 1, F)
        if not last:
            e.wait_vm("c1")
            e.wait_lg_all()
            e("s_barrier")
            e.vmq = ["c1" if t == "c2" else t for t in e.vmq]
            if "post_barrier" in hooks:
                hooks["post_barrier"]()
        dm = []
        if dma:
            e(f"s_sub_u32 {sFILL}, {sCUR}, {sDELTA}")
            self.set_fill(role, stage_reg=sFILL)
            e(f"s_add_u32 {sKX}, {sKX}, 128")
            e(f"s_add_u32 {sKW}, {sKW}, {64*P['RB']}")
            e(f"s_add_u32 {sKW8}, {sKW8}, {64*P['RB']}")
            dm = [(a, (b, "c2")) for (a, b) in dl[:3]]
        if vm_extra and 3 in vm_extra:
            dm = dm + vm_extra[3]
        rd = [] if last else self.reads(role, 0, 0)
        F = self.step_fillers(role, rd, dm, [])
        self.emit_step(role, 1, F)

    def zero_acc(self, n):
        for i in range(n):
            self.e(f"v_mov_b32 v{i}, 0")

    def get_tag(self):
        e = self.e
        e(f"v_readfirstlane_b32 {sT}, v{VE}")
        e(f"s_mul_i32 {sT}, {sT}, 0x9E3779B1")
        e(f"s_add_u32 {sT}, {sT}, 0x7F4A7C15")
        e(f"s_not_b32 {sNT}, {sT}")

    def load_epoch(self):
        e = self.e
        e(f"v_mov_b32 v{VE}, 0")
        e.vm(f"buffer_load_dword v{VE}, v{VE}, {SRD_WS}, 0 offen sc1", "E")

    def gather_addr(self, role):
        e = self.e
        L = f"v{VL}"
        e(f"v_and_b32 v1, 31, {L}")
        e(f"s_lshl_b32 {sA}, {sP}, 10")
        for tb in range(2):
            if role == "wide":
                e(f"s_xor_b32 {sB}, {sCH}, {tb}")
                e(f"s_lshl_b32 {sB}, {sB}, 5")
                e(f"s_add_u32 {sB}, {sB}, {sK0}")
            else:
                e(f"s_add_u32 {sB}, {sK0}, {32*tb}")
            e(f"v_add_u32 v2, {sB}, v1")
            e(f"v_min_u32 v2, 0x3ff, v2")
            e(f"v_add_u32 v2, {sA}, v2")
            e(f"v_lshlrev_b32 v2, 4, v2")
            e(f"v_add_u32 v{VGRA+tb}, {WS_ROW}, v2")
        e(f"v_lshrrev_b32 v2, 5, {L}")
        e(f"v_mul_u32_u24 v2, {NCOL}, v2")
        e(f"v_add_u32 v2, v2, v1")
        if role == "att":
            e(f"s_lshl_b32 {sA}, {sCT}, 6")
            e(f"s_lshl_b32 {sB}, {sCH}, 5")
            e(f"s_add_u32 {sA}, {sA}, {sB}")
        else:
            e(f"s_mul_i32 {sA}, {sCT}, 192")
            e(f"s_lshl_b32 {sB}, {sCH}, 5")
            e(f"s_add_u32 {sA}, {sA}, {sB}")
            e(f"s_add_u32 {sA}, {sA}, 1536")
        e(f"v_add_u32 v3, {sA}, v2")
        e(f"v_lshlrev_b32 v3, 4, v3")
        e(f"v_add_u32 v{VGCA}, {WS_COL}, v3")
        if role == "wide":
            e(f"v_add_u32 v3, {1536+1344}, v2")
            e(f"v_lshlrev_b32 v3, 4, v3")
            e(f"v_add_u32 v{VGCA2}, {WS_COL}, v3")
        e(f"v_min_u32 v2, 9, {L}")
        e(f"s_mul_i32 {sA}, {sN2}, 12")
        e(f"v_add_u32 v2, {sA}, v2")
        e(f"v_lshlrev_b32 v2, 3, v2")
        e(f"v_add_u32 v{VB2FA}, {WS_B2FLAG}, v2")

    def gather_loads(self, role):
        out = []
        for tb in range(2):
            out.append(f"buffer_load_dwordx4 v[{GROW+4*tb}:{GROW+4*tb+3}], v{VGRA+tb}, {SRD_WS}, 0 offen sc1")
        colstep = 512 * 16 if role == "att" else 64 * 16
        for blk in range(3):
            so = blk * colstep
            if so < 4096:
                out.append(f"buffer_load_dwordx4 v[{GCOL+4*blk}:{GCOL+4*blk+3}], v{VGCA}, {SRD_WS}, 0 offen offset:{so} sc1")
            else:
                out.append(("so", so, f"buffer_load_dwordx4 v[{GCOL+4*blk}:{GCOL+4*blk+3}], v{VGCA}, {SRD_WS}, {{so}} offen sc1"))
        if role == "wide":
            out.append(f"buffer_load_dwordx4 v[{GCOL+12}:{GCOL+15}], v{VGCA2}, {SRD_WS}, 0 offen sc1")
        return out

    def emit_gathers(self, role, tag):
        e = self.e
        for g in self.gather_loads(role):
            if isinstance(g, tuple):
                e(f"s_mov_b32 {sE}, {g[1]}")
                e.vm(g[2].format(so=sE), tag)
            else:
                e.vm(g, tag)

    def check_gathers(self, role):
        e = self.e
        nb = 4 if role == "wide" else 3
        Lc, Lok = self.lab("gchk"), self.lab("gok")
        e(f"s_mov_b32 {sSPIN}, 0")
        e(f"{Lc}:")
        e(f"v_cmp_eq_u32 vcc, {sT}, v{GROW+3}")
        e(f"v_cmp_eq_u32 {sM}, {sT}, v{GROW+7}")
        e(f"s_and_b64 vcc, vcc, {sM}")
        for blk in range(nb):
            e(f"v_cmp_eq_u32 {sM}, {sT}, v{GCOL+4*blk+3}")
            e(f"s_and_b64 vcc, vcc, {sM}")
        e(f"s_cmp_eq_u64 vcc, exec")
        e(f"s_cbranch_scc1 {Lok}")
        e(f"s_add_u32 {sSPIN}, {sSPIN}, 1")
        e(f"s_cmp_ge_u32 {sSPIN}, {SPIN_MAX}")
        e(f"s_cbranch_scc1 {Lok}")
        save = list(e.vmq)
        self.emit_gathers(role, "g2")
        e("s_waitcnt vmcnt(0)")
        e.vmq = save
        e(f"s_branch {Lc}")
        e(f"{Lok}:")

    def check_flag(self, vreg, vaddr):
        e = self.e
        Lc, Lok = self.lab("fchk"), self.lab("fok")
        e(f"s_mov_b32 {sSPIN}, 0")
        e(f"{Lc}:")
        e(f"v_cmp_eq_u32 vcc, {sT}, v{vreg}")
        e(f"v_cmp_eq_u32 {sM}, {sNT}, v{vreg+1}")
        e(f"s_and_b64 vcc, vcc, {sM}")
        e(f"s_cmp_eq_u64 vcc, exec")
        e(f"s_cbranch_scc1 {Lok}")
        e(f"s_add_u32 {sSPIN}, {sSPIN}, 1")
        e(f"s_cmp_ge_u32 {sSPIN}, {SPIN_MAX}")
        e(f"s_cbranch_scc1 {Lok}")
        e(f"buffer_load_dwordx2 v[{vreg}:{vreg+1}], v{vaddr}, {SRD_WS}, 0 offen sc1")
        e("s_waitcnt vmcnt(0)")
        e(f"s_branch {Lc}")
        e(f"{Lok}:")

    def b2_setup(self):
        e = self.e
        e(f"s_lshl_b32 {sA}, {sN2}, 1")
        e(f"s_add_u32 {sA}, {sA}, {sCH}")
        e(f"s_mul_i32 {sC}, {sA}, {B2S*1024}")
        e(f"s_xor_b32 {sA}, {sA}, 1")
        e(f"s_mul_i32 {sD}, {sA}, {B2S*1024}")
        e(f"s_mul_i32 {sB}, {sW}, {22*1024}")
        e(f"s_add_u32 {sB}, {sB}, {32*1024 + WS_B2T}")
        e(f"s_add_u32 s88, {sC}, {sB}")
        e(f"s_add_u32 s89, {sD}, {sB}")
        e(f"s_lshl_b32 {sB}, {sW}, 13")
        e(f"s_add_u32 {sB}, {sB}, {WS_B2T}")
        e(f"s_add_u32 s90, {sC}, {sB}")
        e(f"s_add_u32 s91, {sD}, {sB}")

    def b2_loads(self):
        out = []
        for i in range(30):
            for cbb in range(2):
                if i < 22:
                    base, d = f"s{88+cbb}", i
                else:
                    base, d = f"s{90+cbb}", i - 22
                pre = None
                if d % 4 == 0 and d > 0:
                    pre = f"s_add_u32 {base}, {base}, 4096"
                r = 8 * i + 4 * cbb
                out.append((pre, (f"buffer_load_dwordx4 a[{r}:{r+3}], v{VLANE16}, {SRD_WS}, {base} offen offset:{(d%4)*1024} sc1", ("b2", i))))
        return out

    def phase1(self, role):
        e = self.e
        cfg = self.cfg
        P = self.p1_params(role)
        STG = P["STG"]
        e(f"L_{role}:")
        e.vmq, e.lgq = [], []
        self.p1_addr(role)
        self.srds(role)
        self.stamp(0)
        self.load_epoch()
        if role == "ffn":
            self.aux_issue()
        self.set_koff(role, 0)
        self.set_fill(role, stage_imm=0)
        self.issue_chunk_now(role, 0, 99, "c0")
        self.set_koff(role, 1)
        self.set_fill(role, stage_imm=STG)
        self.issue_chunk_now(role, 0, 99, "c1")
        self.gather_addr(role)
        self.b2_setup()
        self.p2_setup(role)
        if role == "att":
            self.att_consts()
        if role == "ffn":
            self.aux_process()
        else:
            e.wait_vm("E")
            self.get_tag()
        self.zero_acc(112 if role == "wide" else 96)
        e.wait_vm("c0")
        e("s_barrier")
        self.stamp(1)
        self.set_koff(role, 2)
        self.set_fill(role, stage_imm=2 * STG)
        self.issue_chunk_now(role, 0, 3, "c2")
        for (t, tag) in self.reads(role, 0, 0):
            e.lg(t, tag)
        e(f"s_mov_b32 {sCUR}, 0")
        e(f"s_mov_b32 {sIT}, 0")
        nd = len(self.dma_list(role))
        entry_vm = ["c1"] * nd + ["c2"] * 3
        assert e.vmq == entry_vm, e.vmq
        entry_lg = list(e.lgq)
        Lloop = f"L_{role}_loop"
        e(f"{Lloop}:")

        def top_hook():
            L = self.lab("nob2f")
            e(f"s_cmp_eq_u32 {sIT}, 4")
            e(f"s_cbranch_scc0 {L}")
            e(f"buffer_load_dwordx2 v[{VFLAG}:{VFLAG+1}], v{VB2FA}, {SRD_WS}, 0 offen sc1")
            e(f"{L}:")

        def post_hook():
            if role == "ffn":
                self.aux_publish_flag()
        self.iteration(role, True, hooks={"top": top_hook, "post_barrier": post_hook})
        assert e.vmq == entry_vm, e.vmq
        assert e.lgq == entry_lg, (e.lgq, entry_lg)
        e(f"s_add_u32 {sIT}, {sIT}, 1")
        e(f"s_cmp_lt_u32 {sIT}, 6")
        e(f"s_cbranch_scc1 {Lloop}")
        self.stamp(2)
        b2 = self.b2_loads()
        e.vmq = ["c1"] * nd + ["junk"] * 3

        def top6():
            self.check_flag(VFLAG, VB2FA)
            self.emit_gathers(role, "g")
        n6, n7 = cfg.b2_it6, cfg.b2_it7

        def split(lst):
            q = (len(lst) + 3) // 4
            return {s: lst[s * q:(s + 1) * q] for s in range(4)}
        self.iteration(role, False, hooks={"top": top6}, vm_extra=split(b2[:n6]))
        self.iteration(role, False, last=True, vm_extra=split(b2[n6:n6 + n7]))
        self.b2_rest = b2[n6 + n7:]
        self.stamp(3)
        e.wait_vm("g")
        self.check_gathers(role)
        if cfg.stop == "p1gemm":
            self.dump_acc(role)
            return
        if role == "att":
            self.att_epilogue()
        else:
            self.ffn_epilogue(role)
        self.stamp(4)

    def dump_acc(self, role):
        e = self.e
        e("s_nop 15")
        e(f"s_lshl_b32 {sA}, s2, 2")
        e(f"s_add_u32 {sA}, {sA}, {sW}")
        e(f"s_mul_i32 {sA}, {sA}, {112*256}")
        e(f"s_add_u32 {sA}, {sA}, {WS_DBG+0x100000}")
        e(f"v_lshlrev_b32 v{VT0}, 2, v{VL}")
        for r in range(112 if role == "wide" else 96):
            e(f"buffer_store_dword v{r}, v{VT0}, {SRD_WS}, {sA} offen")
            e(f"s_add_u32 {sA}, {sA}, 256")
        e("s_waitcnt vmcnt(0)")
        e("s_branch L_fin")

    def oob_select(self, dst, addr, n):
        e = self.e
        e(f"v_mov_b32 v{VT0}, {OOB}")
        e(f"v_cmp_gt_u32 vcc, {n}, v{VL}")
        e(f"v_cndmask_b32 v{dst}, v{VT0}, v{addr}, vcc")

    def aux_issue(self):
        e = self.e
        L = f"v{VL}"
        e(f"s_mul_i32 {sG}, {sRT}, 6")
        e(f"s_add_u32 {sG}, {sG}, {sCT}")
        L1, L2, L3, L4 = self.lab("norow"), self.lab("nocs"), self.lab("nob2"), self.lab("csw1")
        e(f"s_cmp_ge_u32 {sG}, 64")
        e(f"s_cbranch_scc1 {L1}")
        e(f"s_lshl_b32 {sA}, {sG}, 2")
        e(f"s_add_u32 {sA}, {sA}, {sW}")
        e(f"s_lshl_b32 {sA}, {sA}, 13")
        e(f"s_add_u32 {sB}, {sA}, 4096")
        for i in range(8):
            e(f"buffer_load_dwordx4 v[{4*i+16}:{4*i+19}], v{VLANE16}, {SRD_X}, {sA if i < 4 else sB} offen offset:{(i%4)*1024}")
        e(f"{L1}:")
        e(f"s_cmp_ge_u32 {sG}, 92")
        e(f"s_cbranch_scc1 {L2}")
        e(f"""
        s_lshr_b32 {sA}, {sG}, 1
        s_and_b32 {sB}, {sG}, 1
        s_lshl_b32 {sB}, {sB}, 8
        s_lshl_b32 {sC}, {sW}, 6
        s_add_u32 {sB}, {sB}, {sC}
        v_lshrrev_b32 v1, 3, {L}
        v_add_u32 v1, {sB}, v1
        v_bfe_u32 v2, {L}, 4, 2
        v_lshlrev_b32 v2, 1, v2
        v_and_b32 v3, 7, {L}
        v_xor_b32 v2, v2, v3
        v_lshlrev_b32 v2, 4, v2
        s_lshl_b32 {sC}, {sW}, 13
        s_add_u32 {sC}, {sC}, {AUX_CS}
        s_mov_b32 s22, {512*3072}
        s_mov_b32 s23, 0x00020000
        s_cmp_ge_u32 {sA}, 24
        s_cbranch_scc1 {L4}
        """)
        e(f"s_mov_b32 s20, s26")
        e(f"s_and_b32 s21, s27, 0xffff")
        e(f"v_mul_u32_u24 v1, 3072, v1")
        e(f"s_lshl_b32 {sA}, {sA}, 7")
        e(f"v_add3_u32 v1, v1, v2, {sA}")
        e(f"s_mov_b32 {sB}, 0")
        for i in range(8):
            e(f"s_add_u32 m0, {sC}, {1024*i}")
            e(f"s_add_u32 {sB}, {sB}, {8*3072 if i else 0}")
            e(f"buffer_load_dwordx4 v1, {SRD_AUX}, {sB} offen lds")
        e(f"s_branch {L2}")
        e(f"{L4}:")
        e(f"v_mul_u32_u24 v1, 2752, v1")
        e(f"s_sub_u32 {sA}, {sA}, 24")
        e(f"s_lshl_b32 {sA}, {sA}, 7")
        e(f"v_add3_u32 v1, v1, v2, {sA}")
        e(f"s_mov_b32 {sB}, 0")
        for i in range(8):
            e(f"s_add_u32 m0, {sC}, {1024*i}")
            e(f"s_add_u32 {sB}, {sB}, {8*2752 if i else 0}")
            e(f"buffer_load_dwordx4 v1, {SRD_W}, {sB} offen lds")
        e(f"{L2}:")
        e(f"""
        s_mul_i32 {sA}, {sG}, 43
        s_lshr_b32 {sA}, {sA}, 9
        s_mul_i32 {sB}, {sA}, 12
        s_sub_u32 {sB}, {sG}, {sB}
        s_cmp_ge_u32 {sB}, 10
        s_cbranch_scc1 {L3}
        s_mov_b32 s20, s28
        s_and_b32 s21, s29, 0xffff
        s_mov_b32 s22, {512*1024}
        s_mov_b32 s23, 0x00020000
        s_mov_b32 s92, s34
        s_and_b32 s93, s35, 0xffff
        s_mov_b32 s94, {1376*1024}
        s_mov_b32 s95, 0x00020000
        s_mul_i32 {sB}, {sB}, 12
        s_mul_i32 {sC}, {sW}, 3
        s_add_u32 {sB}, {sB}, {sC}
        s_lshl_b32 {sA}, {sA}, 7
        v_and_b32 v1, 7, {L}
        v_lshlrev_b32 v1, 4, v1
        v_add_u32 v1, {sA}, v1
        v_lshrrev_b32 v2, 3, {L}
        v_lshl_add_u32 v4, v2, 10, v1
        v_and_b32 v3, 3, v2
        v_lshrrev_b32 v2, 2, v2
        v_lshl_add_u32 v3, v2, 3, v3
        v_lshl_add_u32 v5, v3, 10, v1
        s_mul_i32 {sC}, {sW}, 6144
        s_add_u32 {sC}, {sC}, {AUX_B2}
        """)
        for m in range(3):
            Lh, Ld = self.lab("b2h"), self.lab("b2d")
            e(f"s_add_u32 {sD}, {sB}, {m}")
            e(f"s_cmp_ge_u32 {sD}, 32")
            e(f"s_cbranch_scc1 {Lh}")
            e(f"s_lshl_b32 {sD}, {sD}, 14")
            e(f"s_add_u32 m0, {sC}, {2048*m}")
            e(f"s_add_u32 {sE}, {sD}, 8192")
            e(f"buffer_load_dwordx4 v4, {SRD_AUX}, {sD} offen lds")
            e(f"s_add_u32 m0, {sC}, {2048*m+1024}")
            e(f"s_nop 0")
            e(f"buffer_load_dwordx4 v4, {SRD_AUX}, {sE} offen lds")
            e(f"s_branch {Ld}")
            e(f"{Lh}:")
            e(f"s_sub_u32 {sD}, {sD}, 32")
            e(f"s_lshl_b32 {sD}, {sD}, 14")
            e(f"s_add_u32 m0, {sC}, {2048*m}")
            e(f"s_add_u32 {sE}, {sD}, 4096")
            e(f"buffer_load_dwordx4 v5, {SRD_W2}, {sD} offen lds")
            e(f"s_add_u32 m0, {sC}, {2048*m+1024}")
            e(f"s_nop 0")
            e(f"buffer_load_dwordx4 v5, {SRD_W2}, {sE} offen lds")
            e(f"{Ld}:")
        e(f"{L3}:")

    def aux_process(self):
        e = self.e
        L = f"v{VL}"
        n = sum(1 for t in e.vmq if t in ("c0", "c1"))
        e(f"s_waitcnt vmcnt({n})")
        e.vmq = [t for t in e.vmq if t in ("c0", "c1")]
        self.get_tag()
        e("s_barrier")
        L1, L2, L3 = self.lab("norow"), self.lab("nocs"), self.lab("nob2")
        e(f"s_cmp_ge_u32 {sG}, 92")
        e(f"s_cbranch_scc1 {L2}")
        e(f"""
        v_bfe_u32 v1, {L}, 2, 2
        v_lshrrev_b32 v2, 4, {L}
        v_lshl_add_u32 v1, v2, 2, v1
        v_bfe_u32 v2, v1, 1, 2
        v_lshlrev_b32 v2, 1, v2
        v_bfe_u32 v3, {L}, 1, 1
        s_lshl_b32 {sA}, {sW}, 1
        v_or_b32 v3, {sA}, v3
        v_xor_b32 v2, v2, v3
        v_lshlrev_b32 v2, 4, v2
        v_lshl_add_u32 v1, v1, 7, v2
        v_and_b32 v2, 1, {L}
        v_lshl_add_u32 v1, v2, 3, v1
        v_add_u32 v1, {AUX_CS}, v1
        """)
        for i in range(16):
            e(f"ds_read_b64_tr_b16 v[{48+2*i}:{49+2*i}], v1 offset:{2048*i}")
        for i in range(4):
            e(f"v_mov_b32 v{4+i}, 0x3f803f80")
        e("s_waitcnt lgkmcnt(8)")
        for m in range(8):
            if m == 4:
                e("s_waitcnt lgkmcnt(0)")
            d = 8 + 4 * (m & 1)
            c = "0" if m < 2 else f"v[{d}:{d+3}]"
            e(f"v_mfma_f32_16x16x32_bf16 v[{d}:{d+3}], v[4:7], v[{48+4*m}:{51+4*m}], {c}")
        e(f"""
        s_lshr_b32 {sA}, {sG}, 1
        s_lshl_b32 {sA}, {sA}, 6
        s_and_b32 {sB}, {sG}, 1
        s_mul_i32 {sB}, {sB}, {NCOL}
        s_add_u32 {sA}, {sA}, {sB}
        s_lshl_b32 {sB}, {sW}, 4
        s_add_u32 {sA}, {sA}, {sB}
        s_lshl_b32 {sA}, {sA}, 4
        s_add_u32 {sA}, {sA}, {WS_COL}
        v_lshl_add_u32 v2, {L}, 4, {sA}
        """)
        self.oob_select(3, 2, 16)
        e(f"""
        v_add_f32 v8, v8, v12
        v_cvt_pk_bf16_f32 v9, v8, v8
        v_and_b32 v9, 0xffff0000, v9
        v_sub_f32 v10, v8, v9
        v_cvt_pk_bf16_f32 v12, v9, v10
        v_lshrrev_b32 v13, 16, v9
        v_mov_b32 v14, {sNT}
        v_mov_b32 v15, {sT}
        buffer_store_dwordx4 v[12:15], v3, {SRD_WS}, 0 offen sc1
        """)
        e(f"{L2}:")
        e(f"""
        s_mul_i32 {sA}, {sG}, 43
        s_lshr_b32 {sA}, {sA}, 9
        s_mul_i32 {sB}, {sA}, 12
        s_sub_u32 {sB}, {sG}, {sB}
        s_cmp_ge_u32 {sB}, 10
        s_cbranch_scc1 {L3}
        v_lshrrev_b32 v1, 5, {L}
        v_bfe_u32 v2, {L}, 2, 2
        v_lshl_add_u32 v1, v1, 3, v2
        v_lshlrev_b32 v1, 7, v1
        v_and_b32 v2, 1, {L}
        v_lshl_add_u32 v1, v2, 5, v1
        v_bfe_u32 v2, {L}, 4, 1
        v_lshl_add_u32 v1, v2, 4, v1
        v_bfe_u32 v2, {L}, 1, 1
        v_lshl_add_u32 v1, v2, 3, v1
        s_mul_i32 {sC}, {sW}, 6144
        s_add_u32 {sC}, {sC}, {AUX_B2}
        v_add_u32 v1, {sC}, v1
        """)
        for m in range(3):
            for nbl in range(2):
                r = 48 + 8 * m + 4 * nbl
                for ii in range(2):
                    e(f"ds_read_b64_tr_b16 v[{r+2*ii}:{r+2*ii+1}], v1 offset:{2048*m + 512*ii + 64*nbl}")
        e(f"""
        s_mul_i32 {sB}, {sB}, 12
        s_mul_i32 {sC}, {sW}, 3
        s_add_u32 {sB}, {sB}, {sC}
        s_mul_i32 {sA}, {sA}, {2*B2S}
        s_add_u32 {sA}, {sA}, {sB}
        s_lshl_b32 {sA}, {sA}, 10
        s_add_u32 {sA}, {sA}, {WS_B2T}
        s_add_u32 {sB}, {sA}, {B2S*1024}
        """)
        for m in range(3):
            e(f"s_waitcnt lgkmcnt({8-4*m})")
            for nbl in range(2):
                r = 48 + 8 * m + 4 * nbl
                e(f"buffer_store_dwordx4 v[{r}:{r+3}], v{VLANE16}, {SRD_WS}, {sA if nbl == 0 else sB} offen offset:{1024*m} sc1")
        e(f"{L3}:")
        e(f"s_cmp_ge_u32 {sG}, 64")
        e(f"s_cbranch_scc1 {L1}")
        S, Q = 80, 88
        e(f"v_mov_b32 v1, 0x3f803f80")
        for i in range(8):
            e(f"v_mov_b32 v{S+i}, 0")
            e(f"v_mov_b32 v{Q+i}, 0")
        for k in range(4):
            for i in range(8):
                e(f"v_dot2c_f32_bf16 v{S+i}, v{16+4*i+k}, v1")
            for i in range(8):
                e(f"v_dot2c_f32_bf16 v{Q+i}, v{16+4*i+k}, v{16+4*i+k}")
        for B in (S, Q):
            for i in range(4):
                e(f"v_permlane32_swap_b32 v{B+i}, v{B+i+4}")
        for B in (S, Q):
            for i in range(4):
                e(f"v_add_f32 v{B+i}, v{B+i}, v{B+i+4}")
        for B in (S, Q):
            for i in range(2):
                e(f"v_permlane16_swap_b32 v{B+i}, v{B+i+2}")
        for B in (S, Q):
            for i in range(2):
                e(f"v_add_f32 v{B+i}, v{B+i}, v{B+i+2}")
        for rot in (8, 4, 2, 1):
            for r in (S, S + 1, Q, Q + 1):
                e(f"v_add_f32_dpp v{r}, v{r}, v{r} row_ror:{rot} row_mask:0xf bank_mask:0xf")
        e(f"""
        v_and_b32 v2, 1, {L}
        v_cmp_eq_u32 vcc, 1, v2
        v_lshlrev_b32 v3, 10, v2
        v_lshrrev_b32 v4, 4, {L}
        v_cndmask_b32 v{S}, v{S}, v{S+1}, vcc
        v_cndmask_b32 v{Q}, v{Q}, v{Q+1}, vcc
        s_lshl_b32 {sA}, {sG}, 2
        s_add_u32 {sA}, {sA}, {sW}
        s_lshl_b32 {sA}, {sA}, 2
        v_add3_u32 v3, v3, v4, {sA}
        v_lshlrev_b32 v3, 4, v3
        v_add_u32 v3, {WS_ROW}, v3
        v_mul_f32 v{S}, {hexf(-1.0/512)}, v{S}
        v_mul_f32 v{Q}, {hexf(1.0/512)}, v{Q}
        v_fma_f32 v{Q}, -v{S}, v{S}, v{Q}
        v_max_f32 v{Q}, 0, v{Q}
        v_add_f32 v{Q}, {hexf(1e-5)}, v{Q}
        v_rsq_f32 v6, v{Q}
        v_cvt_pk_bf16_f32 v4, v{S}, v{S}
        v_and_b32 v5, 0xffff0000, v4
        v_sub_f32 v5, v{S}, v5
        v_cvt_pk_bf16_f32 v5, v5, 0
        v_mov_b32 v7, {sT}
        v_and_b32 v2, 14, {L}
        v_mov_b32 v8, {OOB}
        v_cmp_eq_u32 vcc, 0, v2
        v_cndmask_b32 v3, v8, v3, vcc
        buffer_store_dwordx4 v[4:7], v3, {SRD_WS}, 0 offen sc1
        """)
        e(f"{L1}:")

    def aux_publish_flag(self):
        e = self.e
        L = self.lab("nob2pub")
        e(f"s_add_u32 {sA}, {sIT}, {sW}")
        e(f"s_cmp_eq_u32 {sA}, 0")
        e(f"s_cbranch_scc0 {L}")
        e(f"s_mul_i32 {sA}, {sG}, 43")
        e(f"s_lshr_b32 {sA}, {sA}, 9")
        e(f"s_mul_i32 {sA}, {sA}, 12")
        e(f"s_sub_u32 {sA}, {sG}, {sA}")
        e(f"s_cmp_ge_u32 {sA}, 10")
        e(f"s_cbranch_scc1 {L}")
        e(f"s_lshl_b32 {sA}, {sG}, 3")
        e(f"s_add_u32 {sA}, {sA}, {WS_B2FLAG}")
        e(f"v_mov_b32 v{VT0+1}, {sA}")
        self.oob_select(VT0 + 1, VT0 + 1, 1)
        e(f"v_mov_b32 v{VT0+2}, {sT}")
        e(f"v_mov_b32 v{VT0+3}, {sNT}")
        e(f"buffer_store_dwordx2 v[{VT0+2}:{VT0+3}], v{VT0+1}, {SRD_WS}, 0 offen sc1")
        e(f"{L}:")

    def p2_setup(self, role):
        e = self.e
        L = f"v{VL}"
        if role == "att":
            e(f"s_lshl_b32 {sA}, {sRT}, 3")
            e(f"s_add_u32 {sA}, {sA}, {sCT}")
        else:
            e(f"s_mul_i32 {sA}, {sRT}, 7")
            e(f"s_add_u32 {sA}, {sA}, {sCT}")
            e(f"s_add_u32 {sA}, {sA}, 144")
        e(f"s_lshl_b32 {sA}, {sA}, 3")
        e(f"s_add_u32 {sA}, {sA}, {WS_FLAG}")
        e(f"v_mov_b32 v1, {sA}")
        self.oob_select(VFST, 1, 1)
        e(f"""
        s_lshr_b32 {sA}, {sJ2}, 1
        s_mul_i32 {sA}, {sA}, 7
        s_add_u32 {sA}, {sA}, 144
        v_min_u32 v1, 6, {L}
        v_add_u32 v1, {sA}, v1
        v_lshlrev_b32 v1, 3, v1
        v_add_u32 v{VFA}, {WS_FLAG}, v1
        """)
        e(f"""
        s_lshl_b32 {sA}, {sJ2}, 5
        s_add_u32 {sB}, {sA}, 24
        s_mul_i32 {sB}, {sB}, 575
        s_lshr_b32 {sB}, {sB}, 15
        s_max_u32 {sA}, {sA}, 7
        s_sub_u32 {sA}, {sA}, 7
        s_mul_i32 {sA}, {sA}, 575
        s_lshr_b32 {sA}, {sA}, 15
        s_sub_u32 {sB}, {sB}, {sA}
        v_bfe_u32 v1, {L}, 1, 1
        v_mul_u32_u24 v1, {sB}, v1
        v_add_u32 v1, {sA}, v1
        v_and_b32 v2, 1, {L}
        v_lshl_add_u32 v1, v1, 3, v2
        s_lshl_b32 {sA}, {sW}, 1
        v_add_u32 v1, {sA}, v1
        v_lshlrev_b32 v1, 3, v1
        v_add_u32 v{VFO}, {WS_FLAG}, v1
        """)
        e(f"""
        v_and_b32 v1, 31, {L}
        v_lshrrev_b32 v2, 5, {L}
        s_lshl_b32 {sA}, {sJ2}, 6
        s_add_u32 {sA}, {sA}, {sP}
        s_lshl_b32 {sA}, {sA}, 10
        s_lshl_b32 {sB}, {sN2}, 7
        s_add_u32 {sA}, {sA}, {sB}
        s_lshl_b32 {sB}, {sCH}, 6
        s_add_u32 {sA}, {sA}, {sB}
        v_lshlrev_b32 v3, 11, v1
        v_lshl_add_u32 v3, v2, 5, v3
        v_add_u32 v{VRES}, {sA}, v3
        s_lshl_b32 {sA}, {sP}, 10
        s_lshl_b32 {sB}, {sJ2}, 5
        s_add_u32 {sA}, {sA}, {sB}
        v_add_u32 v1, {sA}, v1
        v_lshlrev_b32 v1, 4, v1
        v_add_u32 v{VRS2}, {WS_ROW}, v1
        s_mul_i32 {sA}, {sP}, {NSTEP*1024}
        v_add_u32 v{VA0}, {sA}, v{VLANE16}
        s_xor_b32 {sA}, {sP}, 1
        s_mul_i32 {sA}, {sA}, {NSTEP*1024}
        v_add_u32 v{VA1}, {sA}, v{VLANE16}
        """)

    def att_consts(self):
        e = self.e
        L = f"v{VL}"
        e(f"v_and_b32 v1, 15, {L}")
        e(f"v_lshrrev_b32 v2, 4, {L}")
        e(f"v_lshlrev_b32 v2, 2, v2")
        e(f"v_sub_u32 v1, v1, v2")
        e(f"v_mov_b32 v4, {hexf(-1e30)}")
        e(f"v_mov_b32 v{MASKC}, 0")
        e(f"v_mov_b32 v{MASKC+1}, 0")
        for r in range(4):
            e(f"v_subrev_u32 v3, {r}, v1")
            e(f"v_cmp_gt_u32 vcc, 8, v3")
            e(f"v_cmp_ge_i32 {sM}, -9, v3")
            e(f"v_cndmask_b32 v{BIASC+r}, v4, 0, vcc")
            e(f"v_cndmask_b32 v{BIASP+r}, v4, 0, {sM}")
            e(f"v_mov_b32 v5, {'0xffff' if r % 2 == 0 else '0xffff0000'}")
            e(f"v_cndmask_b32 v5, 0, v5, {sM}")
            e(f"v_or_b32 v{MASKC+r//2}, v{MASKC+r//2}, v5")
        for i in range(4):
            e(f"v_mov_b32 v{ONES+i}, 0x3f803f80")
        e(f"v_and_b32 v1, 31, {L}")
        e(f"v_lshrrev_b32 v2, 5, {L}")
        e(f"v_lshlrev_b32 v2, 9, v2")
        e(f"s_lshl_b32 {sA}, {sCT}, 2")
        e(f"s_lshl_b32 {sB}, {sCH}, 1")
        e(f"s_add_u32 {sA}, {sA}, {sB}")
        e(f"s_mul_i32 {sB}, {sP}, {NSTEP}")
        e(f"s_add_u32 {sA}, {sA}, {sB}")
        e(f"s_lshl_b32 {sA}, {sA}, 10")
        e(f"s_add_u32 {sA}, {sA}, {WS_ACT}")
        e(f"s_cmp_eq_u32 {sRT}, 0")
        e(f"s_cselect_b32 {sB}, 0, 7")
        e(f"v_mov_b32 v6, {OOB}")
        e(f"s_movk_i32 {sC}, 0x400")
        for tb in range(2):
            e(f"v_add_u32 v3, {32*tb}, v1")
            e(f"v_add_u32 v4, {sK0}, v3")
            e(f"v_cmp_le_u32 vcc, {sB}, v3")
            e(f"v_cmp_gt_u32 {sM}, {sC}, v4")
            e(f"s_and_b64 vcc, vcc, {sM}")
            e(f"v_lshrrev_b32 v5, 5, v4")
            e(f"v_mul_u32_u24 v5, {2*NSTEP*1024}, v5")
            e(f"v_and_b32 v4, 31, v4")
            e(f"v_lshl_add_u32 v4, v4, 4, v2")
            e(f"v_add3_u32 v4, v4, v5, {sA}")
            e(f"v_cndmask_b32 v{VOST+tb}, v6, v4, vcc")
        e(f"s_lshl_b32 {sA}, {sW}, 8")
        e(f"s_add_u32 {sA}, {sA}, {LDS_RV}")
        e(f"v_lshl_add_u32 v{VRVW}, {L}, 2, {sA}")
        e(f"v_lshrrev_b32 v2, 5, {L}")
        e(f"v_lshl_add_u32 v{VRVR}, v2, 4, {sA}")

    def corr_mfmas(self, role):
        out = []
        tiles = [(tb, blk) for blk in range(3) for tb in range(2)]
        if role == "wide":
            tiles.append((0, 3))
        for (tb, blk) in tiles:
            a = self.acc(tb, blk)
            R = f"v[{GROW+4*tb}:{GROW+4*tb+1}]"
            C = f"v[{GCOL+4*blk}:{GCOL+4*blk+1}]"
            if role == "att" and blk == 2:
                out.append(f"v_mfma_f32_32x32x8_bf16 v[{a}:{a+15}], {R}, {C}, v[{a}:{a+15}]")
            else:
                out.append(f"v_mfma_f32_32x32x8_bf16 v[{a}:{a+15}], {C}, {R}, v[{a}:{a+15}]")
        return out

    def b2_drip(self, n):
        e = self.e
        for _ in range(n):
            if not self.b2_rest:
                return
            pre, (t, tag) = self.b2_rest.pop(0)
            if pre:
                e(pre)
            e.vm(t, tag)

    def publish_act(self):
        e = self.e
        self.b2_drip(999)
        e.vm(f"buffer_load_dwordx2 v[{VFLAG}:{VFLAG+1}], v{VFA}, {SRD_WS}, 0 offen sc1", "hf")
        e.wait_vm_all()
        e("s_barrier")
        L = self.lab("nopub")
        e(f"s_cmp_eq_u32 {sW}, 0")
        e(f"s_cbranch_scc0 {L}")
        e(f"v_mov_b32 v{VT0}, {sT}")
        e(f"v_mov_b32 v{VT0+1}, {sNT}")
        e(f"buffer_store_dwordx2 v[{VT0}:{VT0+1}], v{VFST}, {SRD_WS}, 0 offen sc1")
        e(f"{L}:")

    def ffn_epilogue(self, role):
        e = self.e
        for t in self.corr_mfmas(role):
            e(t)
        for tb in range(2):
            if role == "wide":
                e(f"s_xor_b32 {sA}, {sCH}, {tb}")
                e(f"s_lshl_b32 {sB}, {sRT}, 1")
                e(f"s_add_u32 {sA}, {sA}, {sB}")
            else:
                e(f"s_lshl_b32 {sA}, {sRT}, 1")
                e(f"s_add_u32 {sA}, {sA}, {tb}")
            e(f"s_lshl_b32 {sA}, {sA}, 1")
            e(f"s_add_u32 {sA}, {sA}, {sP}")
            e(f"s_mul_i32 {sA}, {sA}, {NSTEP}")
            e(f"s_mul_i32 {sB}, {sCT}, 12")
            e(f"s_add_u32 {sA}, {sA}, {sB}")
            e(f"s_add_u32 {sA}, {sA}, 32")
            dst = sE if tb == 0 else sF
            if role == "wide" and tb == 0:
                e(f"s_add_u32 {sD}, {sA}, 12")
                e(f"s_lshl_b32 {sD}, {sD}, 10")
                e(f"s_add_u32 {sD}, {sD}, {WS_ACT}")
            e(f"s_lshl_b32 {sB}, {sCH}, 1")
            e(f"s_add_u32 {sA}, {sA}, {sB}")
            e(f"s_lshl_b32 {sA}, {sA}, 10")
            e(f"s_add_u32 {dst}, {sA}, {WS_ACT}")
        tiles = [(tb, blk) for blk in range(3) for tb in range(2)]
        if role == "wide":
            tiles.append((0, 3))
        T = 112
        k = 0
        for (tb, blk) in tiles:
            a = self.acc(tb, blk)
            so = sD if blk == 3 else (sE if tb == 0 else sF)
            for half in range(2):
                r = T + 4 * (k % 8)
                k += 1
                for i in range(4):
                    e(f"v_cvt_pk_bf16_f32 v{r+i}, v{a+8*half+2*i}, v{a+8*half+2*i+1}")
                for i in range(4):
                    e(f"v_pk_max_i16 v{r+i}, v{r+i}, 0")
                e.vm(f"buffer_store_dwordx4 v[{r}:{r+3}], v{VLANE16}, {SRD_WS}, {so} offen offset:{1024*half} sc1", "st")
                self.b2_drip(3)
            if blk < 2:
                e(f"s_add_u32 {so}, {so}, 4096")
        self.publish_act()

    def att_epilogue(self):
        e = self.e
        QP, KP, VH = 96, 112, 128
        RV = 144
        RQ, CQ, C64, R64 = 252, 176, 180, 206
        R = [GROW + 2, GROW + 6]
        corr = self.corr_mfmas("att")
        e(f"s_mov_b32 s62, 0")
        e(f"s_mov_b32 s63, -1")
        e(f"v_cndmask_b32 v{R64}, v{R[0]}, v{R[1]}, {sM}")
        e(corr[0])
        e.lg(f"ds_write_b32 v{VRVW}, v{R64}", "rvw")
        e(corr[1])
        for tb in range(2):
            for a in range(4):
                e.lg(f"ds_read_b128 v[{RV+16*tb+4*a}:{RV+16*tb+4*a+3}], v{VRVR} offset:{128*tb+32*a}", ("rv", tb))
            e(corr[2 + tb])
        e(f"v_mul_f32 v{C64}, {hexf(0.25*LOG2E)}, v{R64}")
        for tb in range(2):
            e(f"v_mov_b32 v{RQ+2*tb}, v{R[tb]}")
            e(f"v_mov_b32 v{RQ+2*tb+1}, v{R[tb]}")
        e(corr[4])
        e(corr[5])
        for tb in range(2):
            e(f"v_permlane16_swap_b32 v{RQ+2*tb}, v{RQ+2*tb+1}")
        for b in range(4):
            e(f"v_mul_f32 v{CQ+b}, {hexf(0.25*LOG2E)}, v{RQ+b}")
        self.b2_drip(4)
        for tb in range(2):
            for hd in range(2):
                a, n = self.acc(tb, 0) + 8 * hd, QP + 8 * tb + 4 * hd
                for i in range(4):
                    e(f"v_cvt_pk_bf16_f32 v{n+i}, v{a+2*i}, v{a+2*i+1}")
        for tb in range(2):
            for hd in range(2):
                n = QP + 8 * tb + 4 * hd
                e(f"v_permlane16_swap_b32 v{n}, v{n+2}")
                e(f"v_permlane16_swap_b32 v{n+1}, v{n+3}")
        self.b2_drip(4)
        for tb in range(2):
            a = self.acc(tb, 1)
            for i in range(8):
                e(f"v_pk_mul_f32 v[{a+2*i}:{a+2*i+1}], v[{a+2*i}:{a+2*i+1}], v[{R[tb]}:{R[tb]+1}] op_sel_hi:[1,0]")
        for tb in range(2):
            for hd in range(2):
                a, n = self.acc(tb, 1) + 8 * hd, KP + 8 * tb + 4 * hd
                for i in range(4):
                    e(f"v_cvt_pk_bf16_f32 v{n+i}, v{a+2*i}, v{a+2*i+1}")
        for tb in range(2):
            for hd in range(2):
                n = KP + 8 * tb + 4 * hd
                e(f"v_permlane16_swap_b32 v{n}, v{n+2}")
                e(f"v_permlane16_swap_b32 v{n+1}, v{n+3}")
        self.b2_drip(4)

        def op2(base, hd, blk):
            r = base + 8 * (blk >> 1) + 4 * hd + 2 * (blk & 1)
            return f"v[{r}:{r+1}]"

        def SC(hd, blk):
            return 28 * hd + 4 * blk

        def SP(hd, blk):
            return 28 * hd + 16 + 4 * (blk - 1)
        smf = []
        for hd in range(2):
            for blk in range(4):
                d = SC(hd, blk)
                smf.append(f"v_mfma_f32_16x16x16_bf16 v[{d}:{d+3}], {op2(KP,hd,blk)}, {op2(QP,hd,blk)}, v[{BIASC}:{BIASC+3}]")
                if blk:
                    d = SP(hd, blk)
                    smf.append(f"v_mfma_f32_16x16x16_bf16 v[{d}:{d+3}], {op2(KP,hd,blk-1)}, {op2(QP,hd,blk)}, v[{BIASP}:{BIASP+3}]")
        vops = []
        for tb in range(2):
            a = self.acc(tb, 2)
            for i in range(8):
                vops.append((("rv", tb), f"v_pk_mul_f32 v[{a+2*i}:{a+2*i+1}], v[{a+2*i}:{a+2*i+1}], v[{RV+16*tb+2*i}:{RV+16*tb+2*i+1}]"))
        for tb in range(2):
            for eb in range(2):
                blk = 2 * tb + eb
                a = self.acc(tb, 2) + 8 * eb
                X, Y = VH + 2 * blk, VH + 8 + 2 * blk
                vops.append((None, f"v_cvt_pk_bf16_f32 v{X}, v{a}, v{a+1}"))
                vops.append((None, f"v_cvt_pk_bf16_f32 v{X+1}, v{a+2}, v{a+3}"))
                vops.append((None, f"v_cvt_pk_bf16_f32 v{Y}, v{a+4}, v{a+5}"))
                vops.append((None, f"v_cvt_pk_bf16_f32 v{Y+1}, v{a+6}, v{a+7}"))
        for blk in range(4):
            X, Y = VH + 2 * blk, VH + 8 + 2 * blk
            vops.append((None, f"v_permlane32_swap_b32 v{X}, v{Y}"))
            vops.append((None, f"v_permlane32_swap_b32 v{X+1}, v{Y+1}"))
        for blk in range(4):
            X, Y = VH + 2 * blk, VH + 8 + 2 * blk
            vops.append((None, f"v_permlane16_swap_b32 v{X}, v{Y}"))
            vops.append((None, f"v_permlane16_swap_b32 v{X+1}, v{Y+1}"))
        vi = 0
        for m in smf:
            e(m)
            for _ in range(2):
                if vi < len(vops):
                    t, o = vops[vi]
                    if t:
                        e.wait_lg(t)
                    e(o)
                    vi += 1
        while vi < len(vops):
            t, o = vops[vi]
            if t:
                e.wait_lg(t)
            e(o)
            vi += 1
        self.b2_drip(4)
        MX = 64
        for hd in range(2):
            for blk in range(1, 4):
                for r in range(4):
                    e(f"v_max_f32 v{SC(hd,blk)+r}, v{SC(hd,blk)+r}, v{SP(hd,blk)+r}")
        for hd in range(2):
            for blk in range(4):
                s = SC(hd, blk)
                e(f"v_max3_f32 v{MX+4*hd+blk}, v{s}, v{s+1}, v{s+2}")
        for hd in range(2):
            for blk in range(4):
                s = SC(hd, blk)
                e(f"v_max_f32 v{MX+4*hd+blk}, v{MX+4*hd+blk}, v{s+3}")
        for hd in range(2):
            m = MX + 4 * hd
            e(f"v_permlane16_swap_b32 v{m}, v{m+1}")
            e(f"v_permlane16_swap_b32 v{m+2}, v{m+3}")
        for hd in range(2):
            m = MX + 4 * hd
            e(f"v_max_f32 v{m}, v{m}, v{m+1}")
            e(f"v_max_f32 v{m+2}, v{m+2}, v{m+3}")
        self.b2_drip(2)
        for hd in range(2):
            m = MX + 4 * hd
            e(f"v_permlane32_swap_b32 v{m}, v{m+2}")
        for hd in range(2):
            m = MX + 4 * hd
            e(f"v_max_f32 v{m}, v{m}, v{m+2}")
        for hd in range(2):
            m = MX + 4 * hd
            e(f"v_mul_f32 v{m}, -v{m}, v{C64}")
        for hd in range(2):
            m = MX + 4 * hd
            e(f"v_mov_b32 v{m+2}, v{m}")
        self.b2_drip(2)
        for hd in range(2):
            m = MX + 4 * hd
            e(f"v_permlane32_swap_b32 v{m}, v{m+2}")
        for hd in range(2):
            m = MX + 4 * hd
            e(f"v_mov_b32 v{m+1}, v{m}")
            e(f"v_mov_b32 v{m+3}, v{m+2}")
        self.b2_drip(2)
        for hd in range(2):
            m = MX + 4 * hd
            e(f"v_permlane16_swap_b32 v{m}, v{m+1}")
            e(f"v_permlane16_swap_b32 v{m+2}, v{m+3}")
        def PT(hd, blk):
            return 96 + 4 * (4 * hd + blk)

        def OO(hd, blk):
            return 144 + 4 * (4 * hd + blk)

        for hd in range(2):
            for blk in range(4):
                s = SC(hd, blk)
                for r in range(4):
                    e(f"v_fma_f32 v{s+r}, v{s+r}, v{CQ+blk}, v{MX+4*hd+blk}")
            self.b2_drip(2)
        for hd in range(2):
            for blk in range(4):
                s = SC(hd, blk)
                for r in range(4):
                    e(f"v_exp_f32 v{s+r}, v{s+r}")
            self.b2_drip(2)
        for hd in range(2):
            for blk in range(4):
                s, p = SC(hd, blk), PT(hd, blk)
                e(f"v_cvt_pk_bf16_f32 v{p+2}, v{s}, v{s+1}")
                e(f"v_cvt_pk_bf16_f32 v{p+3}, v{s+2}, v{s+3}")
        for hd in range(2):
            for blk in range(1, 4):
                p = PT(hd, blk)
                e(f"v_and_b32 v{p}, v{p+2}, v{MASKC}")
                e(f"v_and_b32 v{p+1}, v{p+3}, v{MASKC+1}")
            for blk in range(1, 4):
                p = PT(hd, blk)
                e(f"v_xor_b32 v{p+2}, v{p+2}, v{p}")
                e(f"v_xor_b32 v{p+3}, v{p+3}, v{p+1}")
        self.b2_drip(4)
        def SUMR(hd, blk):
            return 4 * (4 * hd + blk)
        for hd in range(2):
            for blk in range(4):
                p, o, s = PT(hd, blk), OO(hd, blk), SUMR(hd, blk)
                vh = VH + 8 * hd
                if blk == 0:
                    e(f"v_mfma_f32_16x16x16_bf16 v[{s}:{s+3}], v[{ONES}:{ONES+1}], v[{p+2}:{p+3}], 0")
                    e(f"v_mfma_f32_16x16x16_bf16 v[{o}:{o+3}], v[{vh}:{vh+1}], v[{p+2}:{p+3}], 0")
                else:
                    e(f"v_mfma_f32_16x16x32_bf16 v[{s}:{s+3}], v[{ONES}:{ONES+3}], v[{p}:{p+3}], 0")
                    e(f"v_mfma_f32_16x16x32_bf16 v[{o}:{o+3}], v[{vh+2*(blk-1)}:{vh+2*(blk-1)+3}], v[{p}:{p+3}], 0")
        self.b2_drip(6)
        for hd in range(2):
            for blk in range(4):
                s = SUMR(hd, blk)
                e(f"v_mul_f32 v{s}, v{s}, v{RQ+blk}")
        for hd in range(2):
            for blk in range(4):
                s = SUMR(hd, blk)
                e(f"v_rcp_f32 v{s}, v{s}")
        for hd in range(2):
            for blk in range(4):
                s, o = SUMR(hd, blk), OO(hd, blk)
                e(f"v_pk_mul_f32 v[{o}:{o+1}], v[{o}:{o+1}], v[{s}:{s+1}] op_sel_hi:[1,0]")
                e(f"v_pk_mul_f32 v[{o+2}:{o+3}], v[{o+2}:{o+3}], v[{s}:{s+1}] op_sel_hi:[1,0]")
        OP = 64
        for hd in range(2):
            for blk in range(4):
                o = OO(hd, blk)
                n = OP + 4 * (2 * hd + (blk >> 1)) + 2 * (blk & 1)
                e(f"v_cvt_pk_bf16_f32 v{n}, v{o}, v{o+1}")
                e(f"v_cvt_pk_bf16_f32 v{n+1}, v{o+2}, v{o+3}")
        for hd in range(2):
            for tb in range(2):
                n = OP + 4 * (2 * hd + tb)
                e(f"v_permlane16_swap_b32 v{n}, v{n+2}")
                e(f"v_permlane16_swap_b32 v{n+1}, v{n+3}")
        for hd in range(2):
            for tb in range(2):
                n = OP + 4 * (2 * hd + tb)
                e.vm(f"buffer_store_dwordx4 v[{n}:{n+3}], v{VOST+tb}, {SRD_WS}, 0 offen offset:{1024*hd} sc1", "st")
        self.publish_act()

    def phase2(self):
        e = self.e
        cfg = self.cfg
        e("L_p2:")
        e.vmq, e.lgq = [], []
        if cfg.stop == "p1":
            e("s_waitcnt vmcnt(0)")
            e("s_branch L_fin")
            return
        self.stamp(5)
        e.vm(f"buffer_load_dwordx4 v[{RES}:{RES+3}], v{VRES}, {SRD_X}, 0 offen", "res")
        e.vm(f"buffer_load_dwordx4 v[{RES+4}:{RES+7}], v{VRES}, {SRD_X}, 0 offen offset:16", "res")
        e.vm(f"buffer_load_dwordx4 v[{G2}:{G2+3}], v{VRS2}, {SRD_WS}, 0 offen sc1", "g2")
        e(f"""
        s_lshl_b32 {sA}, {sJ2}, 1
        s_mul_i32 {sA}, {sA}, {NSTEP*1024}
        s_add_u32 {sA}, {sA}, {WS_ACT}
        s_mul_i32 {sB}, {sW}, 22
        s_add_u32 {sB}, {sB}, 32
        s_lshl_b32 {sC}, {sB}, 10
        s_add_u32 {sAH}, {sA}, {sC}
        s_add_u32 {sC}, {sB}, 20
        s_min_u32 {sC}, {sC}, {NSTEP-1}
        s_lshl_b32 {sC}, {sC}, 10
        s_add_u32 {sX20}, {sA}, {sC}
        s_add_u32 {sC}, {sB}, 21
        s_min_u32 {sC}, {sC}, {NSTEP-1}
        s_lshl_b32 {sC}, {sC}, 10
        s_add_u32 {sX21}, {sA}, {sC}
        s_lshl_b32 {sC}, {sW}, 13
        s_add_u32 {sAO}, {sA}, {sC}
        """)
        self.check_flag(VFLAG, VFA)
        self.stamp(6)

        def loads(i):
            r = RING + 8 * (i % RING_D)
            out = []
            if i < 20:
                so, off = sAH, (i % 4) * 1024
                pre = f"s_add_u32 {sAH}, {sAH}, 4096" if (i % 4 == 0 and i > 0) else None
            elif i < 22:
                so, off, pre = (sX20 if i == 20 else sX21), 0, None
            else:
                d = i - 22
                so, off = sAO, (d % 4) * 1024
                pre = f"s_add_u32 {sAO}, {sAO}, 4096" if d == 4 else None
            return pre, [f"buffer_load_dwordx4 v[{r}:{r+3}], v{VA0}, {SRD_WS}, {so} offen offset:{off} sc1",
                         f"buffer_load_dwordx4 v[{r+4}:{r+7}], v{VA1}, {SRD_WS}, {so} offen offset:{off} sc1"]

        def issue(i):
            pre, ld = loads(i)
            if pre:
                e(pre)
            for t in ld:
                e.vm(t, ("a", i))
        for i in range(RING_D):
            issue(i)
        OF_ISSUE, OF_CHECK = 22 - RING_D - 4, 22 - RING_D
        for i in range(30):
            if i == OF_ISSUE:
                e.vm(f"buffer_load_dwordx2 v[{VFLAG}:{VFLAG+1}], v{VFO}, {SRD_WS}, 0 offen sc1", "of")
            if i == OF_CHECK:
                e.wait_vm("of")
                save = list(e.vmq)
                self.check_flag(VFLAG, VFO)
                e.vmq = save
                self.stamp(7)
            e.wait_vm(("a", i))
            r = RING + 8 * (i % RING_D)
            k = 0
            for cs in range(2):
                for ps in range(2):
                    a = 16 * (2 * cs + ps)
                    c = "0" if i == 0 else f"v[{a}:{a+15}]"
                    e(f"v_mfma_f32_32x32x16_bf16 v[{a}:{a+15}], a[{8*i+4*cs}:{8*i+4*cs+3}], v[{r+4*ps}:{r+4*ps+3}], {c}")
                    k += 1
            if i + RING_D < 30:
                issue(i + RING_D)
        self.stamp(8)
        WA = RING
        for sl in range(1, 4):
            e(f"s_xor_b32 {sA}, {sW}, {sl}")
            e(f"s_mul_i32 {sA}, {sA}, {3*4096}")
            e(f"s_add_u32 {sA}, {sA}, {(sl-1)*4096}")
            e(f"v_add_u32 v{WA+sl}, {sA}, v{VLANE16}")
        e(f"s_mul_i32 {sA}, {sW}, {3*4096}")
        e(f"v_add_u32 v{WA}, {sA}, v{VLANE16}")
        for sl in range(1, 4):
            for q in range(4):
                a = 16 * sl + 4 * q
                e.lg(f"ds_write_b128 v{WA+sl}, v[{a}:{a+3}] offset:{1024*q}", "rw")
        RX = 80
        e.wait_vm("res")
        for i in range(8):
            e(f"v_lshlrev_b32 v{RX+2*i}, 16, v{RES+i}")
            e(f"v_and_b32 v{RX+2*i+1}, 0xffff0000, v{RES+i}")
        Lc, Lok = self.lab("g2chk"), self.lab("g2ok")
        e.wait_vm("g2")
        e(f"s_mov_b32 {sSPIN}, 0")
        e(f"{Lc}:")
        e(f"v_cmp_eq_u32 vcc, {sT}, v{G2+3}")
        e(f"s_cmp_eq_u64 vcc, exec")
        e(f"s_cbranch_scc1 {Lok}")
        e(f"s_add_u32 {sSPIN}, {sSPIN}, 1")
        e(f"s_cmp_ge_u32 {sSPIN}, {SPIN_MAX}")
        e(f"s_cbranch_scc1 {Lok}")
        e(f"buffer_load_dwordx4 v[{G2}:{G2+3}], v{VRS2}, {SRD_WS}, 0 offen sc1")
        e("s_waitcnt vmcnt(0)")
        e(f"s_branch {Lc}")
        e(f"{Lok}:")
        e.wait_lg_all()
        e("s_barrier")
        RD = 96
        for sl in range(1, 4):
            for q in range(4):
                r = RD + 16 * (sl - 1) + 4 * q
                e.lg(f"ds_read_b128 v[{r}:{r+3}], v{WA} offset:{4096*(sl-1)+1024*q}", ("rr", sl))
        for sl in range(1, 4):
            e.wait_lg(("rr", sl))
            for i in range(8):
                r = RD + 16 * (sl - 1) + 2 * i
                e(f"v_pk_add_f32 v[{2*i}:{2*i+1}], v[{2*i}:{2*i+1}], v[{r}:{r+1}]")
        for i in range(8):
            e(f"v_pk_fma_f32 v[{2*i}:{2*i+1}], v[{2*i}:{2*i+1}], v[{G2+2}:{G2+3}], v[{RX+2*i}:{RX+2*i+1}] op_sel_hi:[1,0,1]")
        for i in range(8):
            e(f"v_cvt_pk_bf16_f32 v{16+i}, v{2*i}, v{2*i+1}")
        e.vm(f"buffer_store_dwordx4 v[16:19], v{VRES}, {SRD_OUT}, 0 offen", "out")
        e.vm(f"buffer_store_dwordx4 v[20:23], v{VRES}, {SRD_OUT}, 0 offen offset:16", "out")
        self.stamp(9)
        Lskip = self.lab("noepoch")
        e(f"s_or_b32 {sA}, s2, {sW}")
        e(f"s_cmp_eq_u32 {sA}, 0")
        e(f"s_cbranch_scc0 {Lskip}")
        e(f"v_lshlrev_b32 v32, 3, v{VL}")
        e(f"v_add_u32 v32, {WS_FLAG}, v32")
        Lc, Lok = self.lab("echk"), self.lab("eok")
        e(f"s_mov_b32 {sSPIN}, 0")
        e(f"{Lc}:")
        for q in range(4):
            e(f"buffer_load_dwordx2 v[{34+2*q}:{35+2*q}], v32, {SRD_WS}, 0 offen offset:{512*q} sc1")
        e("s_waitcnt vmcnt(0)")
        e(f"s_mov_b64 {sM2}, exec")
        for q in range(4):
            e(f"v_cmp_eq_u32 vcc, {sT}, v{34+2*q}")
            e(f"v_cmp_eq_u32 {sM}, {sNT}, v{35+2*q}")
            e(f"s_and_b64 {sM2}, {sM2}, vcc")
            e(f"s_and_b64 {sM2}, {sM2}, {sM}")
        e(f"s_cmp_eq_u64 {sM2}, exec")
        e(f"s_cbranch_scc1 {Lok}")
        e(f"s_add_u32 {sSPIN}, {sSPIN}, 1")
        e(f"s_cmp_lt_u32 {sSPIN}, {SPIN_MAX}")
        e(f"s_cbranch_scc1 {Lc}")
        e(f"{Lok}:")
        e(f"v_mov_b32 v33, 0")
        self.oob_select(33, 33, 1)
        e(f"v_mov_b32 v34, {sT}")
        e(f"buffer_store_dword v34, v33, {SRD_WS}, 0 offen sc1")
        e(f"{Lskip}:")
        e("s_waitcnt vmcnt(0)")

    def build(self):
        e = self.e
        self.entry()
        for role in ("att", "ffn", "wide"):
            self.phase1(role)
            e("s_branch L_p2")
        self.phase2()
        e("L_fin:")
        self.dump_stamps()
        e("L_end:")
        e("s_endpgm")
        lines = fix_hazards(e.lines, verbose=True)
        hdr = f"""; LayerNorm -> (dilated sliding-window attention | ReLU FFN) -> projection + residual, one persistent launch
; @launch grid=(256,1,1) block=(256,1,1) lds=163840
.amdgcn_target "amdgcn-amd-amdhsa--gfx950"
.text
.globl {KNAME}
.p2align 8
.type {KNAME},@function
{KNAME}:
"""
        ftr = f"""
.section .rodata,"a"
.p2align 6
.amdhsa_kernel {KNAME}
  .amdhsa_next_free_vgpr 512
  .amdhsa_next_free_sgpr 102
  .amdhsa_accum_offset 256
  .amdhsa_group_segment_fixed_size 0
  .amdhsa_kernarg_size 72
  .amdhsa_user_sgpr_count 2
  .amdhsa_user_sgpr_kernarg_segment_ptr 1
  .amdhsa_system_sgpr_workgroup_id_x 1
.end_amdhsa_kernel
"""
        return hdr + "\n".join(lines) + "\n" + ftr


if __name__ == "__main__":
    cfg = Cfg()
    open(sys.argv[1] if len(sys.argv) > 1 else "k.s", "w").write(Gen(cfg).build())
```

```python
import re

REG_RE = re.compile(r"^(-?\|?)([vas])(\d+)\|?$")
RNG_RE = re.compile(r"^(-?\|?)([vas])\[(\d+):(\d+)\]\|?$")

TRANS = ("v_exp_f32", "v_log_f32", "v_rcp_f32", "v_rsq_f32", "v_sqrt_f32", "v_sin_f32", "v_cos_f32")


def regs_of(tok):
    tok = tok.strip()
    m = REG_RE.match(tok)
    if m:
        return [(m.group(2), int(m.group(3)))]
    m = RNG_RE.match(tok)
    if m:
        return [(m.group(2), i) for i in range(int(m.group(3)), int(m.group(4)) + 1)]
    if tok in ("vcc", "vcc_lo", "vcc_hi"):
        return [("s", "vcc")]
    if tok in ("exec", "exec_lo", "exec_hi"):
        return [("s", "exec")]
    if tok == "m0":
        return [("s", "m0")]
    return []


def split_ops(s):
    out, depth, cur = [], 0, ""
    for ch in s:
        if ch == "[":
            depth += 1
        if ch == "]":
            depth -= 1
        if ch == "," and depth == 0:
            out.append(cur.strip())
            cur = ""
        else:
            cur += ch
    if cur.strip():
        out.append(cur.strip())
    return out


class Ins:
    __slots__ = ("text", "op", "kind", "w", "r", "info", "label", "target", "mods")

    def __init__(self, text):
        self.text = text
        self.label = None
        self.target = None
        self.w = []
        self.r = []
        self.info = {}
        self.kind = "other"
        t = text.split(";")[0].strip()
        if t.endswith(":"):
            self.label = t[:-1]
            self.kind = "label"
            self.op = ""
            return
        if t.startswith(".") or not t:
            self.kind = "directive"
            self.op = ""
            return
        parts = t.split(None, 1)
        op = parts[0]
        self.op = op
        rest = parts[1] if len(parts) > 1 else ""
        ops = split_ops(rest)
        mods = []
        if ops:
            last = ops[-1].split()
            ops[-1] = last[0]
            mods = last[1:]
        self.mods = mods
        R = lambda i: regs_of(ops[i]) if i < len(ops) else []
        base = re.sub(r"_(e32|e64|dpp|sdwa)$", "", op)
        if op.startswith("v_mfma"):
            self.kind = "mfma"
            self.w = R(0)
            self.info["A"] = R(1)
            self.info["B"] = R(2)
            self.info["C"] = R(3)
            self.r = R(1) + R(2) + R(3)
            self.info["passes"] = 8 if "32x32" in op else 4
        elif op.startswith("v_"):
            self.kind = "valu"
            if base.startswith("v_permlane") and "swap" in base:
                self.info["perm"] = True
                self.w = R(0) + R(1)
                self.r = R(0) + R(1)
            elif base.startswith("v_cmp"):
                self.w = R(0)
                self.r = sum((R(i) for i in range(1, len(ops))), [])
            elif base in ("v_readfirstlane_b32", "v_readlane_b32"):
                self.info["readlane"] = True
                self.w = R(0)
                self.r = sum((R(i) for i in range(1, len(ops))), [])
            else:
                self.w = R(0)
                self.r = sum((R(i) for i in range(1, len(ops))), [])
                if base in ("v_fmac_f32", "v_mac_f32", "v_dot2c_f32_bf16", "v_writelane_b32", "v_fmamk_f32_x"):
                    self.r += R(0)
                if base == "v_cndmask_b32" and len(ops) == 3:
                    self.r += [("s", "vcc")]
            if base in TRANS:
                self.info["trans"] = True
            if base.startswith("v_dot2"):
                self.info["dot"] = base
                self.info["dotC"] = R(0) if base.startswith("v_dot2c") else R(3)
                self.info["dotAB"] = R(1) + R(2)
            if op.endswith("_dpp") or any(m.startswith(("row_", "quad_perm", "wave_")) for m in mods):
                self.info["dpp"] = True
                self.r += R(0) if False else []
            if op.endswith("_sdwa") or any(m.startswith("op_sel:") for m in mods):
                self.info["opsel"] = True
        elif op.startswith("ds_"):
            self.kind = "ds"
            if op.startswith("ds_read") or op.startswith("ds_bpermute") or op.startswith("ds_swizzle"):
                self.w = R(0)
                self.r = sum((R(i) for i in range(1, len(ops))), [])
            else:
                self.r = sum((R(i) for i in range(0, len(ops))), [])
        elif op.startswith("buffer_"):
            self.kind = "vmem"
            if "lds" in mods:
                self.info["ldsdma"] = True
                self.r = sum((R(i) for i in range(0, len(ops))), []) + [("s", "m0")]
            elif op.startswith("buffer_load"):
                self.w = R(0)
                self.r = sum((R(i) for i in range(1, len(ops))), [])
            else:
                self.r = sum((R(i) for i in range(0, len(ops))), [])
                if op.endswith(("x3", "x4")):
                    self.info["wide_store"] = R(0)
        elif op.startswith("global_"):
            self.kind = "vmem"
            if op.startswith("global_load_lds"):
                self.info["ldsdma"] = True
                self.r = sum((R(i) for i in range(0, len(ops))), []) + [("s", "m0")]
            elif op.startswith("global_load"):
                self.w = R(0)
                self.r = sum((R(i) for i in range(1, len(ops))), [])
            else:
                self.r = sum((R(i) for i in range(0, len(ops))), [])
                if op.endswith(("x3", "x4")):
                    self.info["wide_store"] = R(1)
        elif op.startswith("s_"):
            if op == "s_nop":
                self.kind = "nop"
                self.info["n"] = int(ops[0], 0) + 1
            elif op in ("s_branch",) or op.startswith("s_cbranch"):
                self.kind = "branch"
                self.target = ops[0]
                self.info["uncond"] = op == "s_branch"
            elif op == "s_endpgm":
                self.kind = "end"
            elif op.startswith(("s_waitcnt", "s_barrier", "s_setprio", "s_sleep")):
                self.kind = "sctl"
            elif op.startswith(("s_load", "s_memtime", "s_memrealtime")):
                self.kind = "smem"
                self.w = R(0)
                self.r = sum((R(i) for i in range(1, len(ops))), [])
            elif op.startswith("s_cmp") or op.startswith("s_bitcmp"):
                self.kind = "salu"
                self.r = sum((R(i) for i in range(0, len(ops))), [])
            else:
                self.kind = "salu"
                self.w = R(0)
                self.r = sum((R(i) for i in range(1, len(ops))), [])
                if "saveexec" in op:
                    self.w += [("s", "exec")]
        else:
            raise ValueError("unknown instruction: " + text)


MAXAGE = 22


def isvec(r):
    return r[0] in ("v", "a")


def need_states(ins, st):
    need = 0
    why = None

    def req(key, n, msg):
        nonlocal need, why
        if key in st and st[key] < n and n - st[key] > need:
            need = n - st[key]
            why = msg

    k = ins.kind
    if k == "mfma":
        P = ins.info["passes"]
        for r in ins.r:
            req(("valu_w", r), 2, "valu->mfma")
            req(("trans_w", r), 2, "trans->mfma")
            req(("dot_w", r), 3, "dot->mfma")
        for r in ins.info["A"] + ins.info["B"]:
            req(("mfma4_w", r), 8, "mfma4->AB")
            req(("mfma8_w", r), 12, "mfma8->AB")
        C = ins.info["C"]
        for r in C:
            for (ev, n) in (("mfma4_w", 6), ("mfma8_w", 10)):
                key = (ev, r)
                if key in st:
                    sig = st.get(("sig", r))
                    exact = ("sigeq", r) in st and False
                    prod = st.get(("prod", r))
                    if prod == (P, C[0], len(C)):
                        continue
                    req(key, n, "mfma->C overlap")
        for r in ins.w:
            req(("wstore", r), 1, "store data WAR (mfma)")
        for r in ins.w:
            if r in C:
                continue
            req(("mfma4_w", r), 8, "mfma->mfma WAW")
            req(("mfma8_w", r), 12, "mfma->mfma WAW")
    elif k == "valu":
        for r in ins.r + ins.w:
            if isvec(r):
                req(("mfma4_w", r), 8, "mfma4->valu")
                req(("mfma8_w", r), 12, "mfma8->valu")
        for r in ins.w:
            if isvec(r):
                req(("mfmaC4_r", r), 3, "mfmaC WAR")
                req(("mfmaC8_r", r), 7, "mfmaC WAR")
                req(("wstore", r), 2, "store data WAR")
                if not (ins.info.get("dot") and st.get(("dotop", r)) == ins.info["dot"]):
                    req(("dot_w", r), 3, "dot WAW")
        for r in ins.r:
            if isvec(r):
                if not ins.info.get("trans"):
                    req(("trans_w", r), 1, "trans->valu")
                else:
                    req(("trans_w", r), 1, "trans->trans")
                if ins.info.get("dpp") or ins.info.get("perm"):
                    req(("valu_w", r), 2, "valu->dpp/perm")
                    req(("trans_w", r), 2, "valu->dpp/perm")
                if ins.info.get("readlane"):
                    req(("valu_w", r), 1, "valu->readlane")
                    req(("trans_w", r), 1, "valu->readlane")
                req(("opsel_w", r), 1, "opsel->valu")
                if not (ins.info.get("dot") and st.get(("dotop", r)) == ins.info["dot"] and r in ins.info["dotC"] and r not in ins.info["dotAB"]):
                    req(("dot_w", r), 3, "dot->valu")
            else:
                req(("valu_sw", r), 4 if ins.info.get("readlane") else 2, "valu sgpr->valu const")
        if ins.info.get("dpp"):
            for r in ins.w:
                req(("valu_w", r), 2, "valu->dpp old")
    elif k in ("vmem", "ds"):
        for r in ins.r + ins.w:
            if isvec(r):
                req(("mfma4_w", r), 8, "mfma4->mem")
                req(("mfma8_w", r), 12, "mfma8->mem")
                if r in ins.r:
                    req(("dot_w", r), 3, "dot->mem")
                    req(("trans_w", r), 1, "trans->mem")
        for r in ins.w:
            if isvec(r):
                req(("wstore", r), 1, "store data WAR (load)")
                req(("mfmaC4_r", r), 3, "mfmaC WAR (load)")
                req(("mfmaC8_r", r), 7, "mfmaC WAR (load)")
        if k == "vmem":
            for r in ins.r:
                if not isvec(r):
                    req(("valu_sw", r), 5, "valu sgpr->vmem")
            if ins.info.get("ldsdma"):
                req(("salu_m0", ("s", "m0")), 1, "m0->ldsdma")
    elif k in ("salu", "smem", "branch"):
        for r in ins.r:
            req(("valu_sw", r), 1, "valu sgpr->salu (pad)")
        if k == "branch" and "vcc" in ins.op:
            req(("valu_sw", ("s", "vcc")), 5, "vcc->branch")
    return need, why


def step(ins, st):
    n = ins.info.get("n", 1) if ins.kind == "nop" else 1
    if ins.kind in ("label", "directive"):
        return st
    new = {}
    for key, age in st.items():
        if key[0] in ("prod", "dotop"):
            new[key] = age
        else:
            a = age + n
            if a < MAXAGE:
                new[key] = a
    st = new
    k = ins.kind

    def clear(r):
        for ev in ("valu_w", "trans_w", "mfma4_w", "mfma8_w", "dot_w", "opsel_w", "prod", "dotop"):
            st.pop((ev, r), None)

    if k == "mfma":
        P = ins.info["passes"]
        for r in ins.w:
            clear(r)
            st[("mfma%d_w" % P, r)] = 0
            st[("prod", r)] = (P, ins.w[0], len(ins.w))
        for r in ins.info["C"]:
            st[("mfmaC%d_r" % P, r)] = 0
    elif k == "valu":
        for r in ins.w:
            if isvec(r):
                clear(r)
                if ins.info.get("trans"):
                    st[("trans_w", r)] = 0
                elif ins.info.get("dot"):
                    st[("dot_w", r)] = 0
                    st[("dotop", r)] = ins.info["dot"]
                    st[("valu_w", r)] = 0
                else:
                    st[("valu_w", r)] = 0
                if ins.info.get("opsel"):
                    st[("opsel_w", r)] = 0
            else:
                st[("valu_sw", r)] = 0
    elif k in ("vmem", "ds"):
        for r in ins.w:
            clear(r)
        ws = ins.info.get("wide_store")
        if ws:
            for r in ws:
                st[("wstore", r)] = 0
        if k == "ds" and ins.op.startswith("ds_write_b128"):
            pass
    elif k in ("salu", "smem"):
        for r in ins.w:
            st.pop(("valu_sw", r), None)
            if r == ("s", "m0"):
                st[("salu_m0", r)] = 0
    for key in [x for x in st if x[0] == "prod"]:
        r = key[1]
        if ("mfma4_w", r) not in st and ("mfma8_w", r) not in st:
            del st[key]
    for key in [x for x in st if x[0] == "dotop"]:
        if ("dot_w", key[1]) not in st:
            del st[key]
    return st


def merge(a, b):
    if a is None:
        return dict(b)
    out = dict(a)
    for key, v in b.items():
        if key[0] in ("prod", "dotop"):
            if key in out and out[key] != v:
                out[key] = ("mixed",)
            elif key not in out:
                out[key] = v
        else:
            out[key] = min(out[key], v) if key in out else v
    return out


def fix_hazards(lines, verbose=False):
    total = 0
    for _ in range(200):
        ins = [Ins(l) for l in lines]
        labels = {x.label: i for i, x in enumerate(ins) if x.label}
        n = len(ins)
        state_in = [None] * (n + 1)
        state_in[0] = {}
        work = [0]
        while work:
            i = work.pop()
            st = state_in[i]
            while i < n:
                x = ins[i]
                st = step(x, dict(st))
                nxt = []
                if x.kind == "end":
                    break
                if x.kind == "branch":
                    if x.target in labels:
                        t = labels[x.target]
                        m = merge(state_in[t], st)
                        if m != state_in[t]:
                            state_in[t] = m
                            work.append(t)
                    if x.info["uncond"]:
                        break
                i += 1
                m = merge(state_in[i], st)
                if m == state_in[i]:
                    break
                state_in[i] = m
                st = m
        inserts = []
        for i, x in enumerate(ins):
            if state_in[i] is None or x.kind in ("label", "directive", "nop"):
                continue
            need, why = need_states(x, state_in[i])
            if need > 0:
                inserts.append((i, need, why))
        if not inserts:
            if verbose:
                print("hazard nops inserted:", total)
            return lines
        last = -100
        out = []
        ins_map = {}
        for (i, need, why) in inserts:
            if i - last > 24:
                ins_map[i] = (need, why)
                last = i
        for i, l in enumerate(lines):
            if i in ins_map:
                need, why = ins_map[i]
                total += 1
                while need > 0:
                    c = min(need, 16)
                    out.append(f"  s_nop {c-1}")
                    need -= c
            out.append(l)
        lines = out
    raise RuntimeError("hazard fixer did not converge")


class Em:
    def __init__(self):
        self.lines = []
        self.vmq = []
        self.lgq = []
        self.hook = None
        self.in_hook = False

    def __call__(self, s):
        for l in s.split("\n"):
            l = l.strip()
            if not l or l.startswith(";"):
                continue
            self.lines.append(l if l.endswith(":") else "  " + l)
            if self.hook and not self.in_hook:
                self.in_hook = True
                self.hook(l)
                self.in_hook = False

    def vm(self, s, tag=None):
        self(s)
        self.vmq.append(tag)

    def lg(self, s, tag=None):
        self(s)
        self.lgq.append(tag)

    def vm_need(self, tags):
        if isinstance(tags, str) or isinstance(tags, tuple):
            tags = [tags]
        last = -1
        for i, t in enumerate(self.vmq):
            if t in tags:
                last = i
        if last < 0:
            return None
        return len(self.vmq) - 1 - last

    def wait_vm(self, tags, extra=""):
        n = self.vm_need(tags)
        if n is None:
            return
        n = min(n, 63)
        self(f"s_waitcnt vmcnt({n})")
        self.vmq = self.vmq[len(self.vmq) - n:] if n else []

    def wait_vm_all(self):
        self("s_waitcnt vmcnt(0)")
        self.vmq = []

    def lg_need(self, tags):
        if isinstance(tags, str) or isinstance(tags, tuple):
            tags = [tags]
        last = -1
        for i, t in enumerate(self.lgq):
            if t in tags:
                last = i
        if last < 0:
            return None
        return len(self.lgq) - 1 - last

    def wait_lg(self, tags):
        n = self.lg_need(tags)
        if n is None:
            return
        n = min(n, 15)
        self(f"s_waitcnt lgkmcnt({n})")
        self.lgq = self.lgq[len(self.lgq) - n:] if n else []

    def wait_lg_all(self):
        self("s_waitcnt lgkmcnt(0)")
        self.lgq = []

    def text(self):
        return "\n".join(self.lines) + "\n"
```

```python
import sys
from asmgen import Em, fix_hazards

KNAME = "parallel_sum__sliding_local_dilated__dense_activation_relu__prompt_kernel"

WS_E = 0x0
WS_FLAG = 0x1000
WS_B2FLAG = 0x2000
WS_ROW = 0x10000
NCOL = 2944
WS_COL = 0x20000
WS_B2T = 0x40000
B2S = 120
WS_ACT = 0x300000
NSTEP = 118
WS_DBG = 0x1000000
OOB = 0x7FFFFF00

LOG2E = 1.4426950408889634

SRD_X, SRD_W, SRD_WS, SRD_OUT, SRD_AUX = "s[4:7]", "s[8:11]", "s[12:15]", "s[16:19]", "s[20:23]"
sW = "s3"
sXCD, sIDX = "s40", "s41"
sRT, sCT, sK0, sP, sCH = "s42", "s43", "s44", "s45", "s46"
sCSO, sCSP, sCSM, sCSG = "s47", "s48", "s49", "s50"
sKX, sKW, sKW8, sWX, sWW = "s51", "s52", "s53", "s54", "s55"
sT, sNT, sSPIN, sJ2, sN2 = "s56", "s57", "s58", "s59", "s60"
sA, sB, sC, sD = "s61", "s96", "s97", "s98"
sE, sF = "s99", "s100"
sM = "s[62:63]"
sM2 = "s[30:31]"
sG2 = "s101"
SRD_CS = "s[92:95]"
sROW, sB2D = "s90", "s91"
sAH, sAO, sX20, sX21, sAB, sDB, sDO = "s24", "s25", "s26", "s27", "s28", "s29", "s32"
sH0, HM0, HM1 = "s36", "s[30:31]", "s[34:35]"
SPIN_MAX = 1 << 18

ACC = 0
XF = 112
WF = 128
VXA = 160
VXA1 = 164
VWA = 168
VWA2 = 169
VXD = 170
VWD = 174
GROW = 182
GCOL = 190
VFLAG = 206
VLANE16 = 208
VL = 209
VE = 210
VGRA = 211
VGCA = 213
VGCA2 = 214
VB2FA = 215
BIASC = 216
BIASP = 220
MASKC = 224
ONES = 226
VOST = 230
VRVW = 232
VRVR = 233
VFA = 234
VFO = 235
VRES = 236
VRS2 = 237
VFST = 238
VA1 = 239
VA0 = 181
RES = 240
G2 = 248
VT0 = 252
LDS_RV = 122880
AUX_CS = 122880
AUX_B2 = AUX_CS + 32768
VFW = 210
TB = 182
VROWS = 190
CSA = 208
RING = 64
RING_D = 10


def hexf(x):
    import struct
    return "0x%08x" % struct.unpack("<I", struct.pack("<f", x))[0]


class Cfg:
    def __init__(self, **kw):
        self.stamps = False
        self.stop = None
        self.stampset = "main"
        self.cap = 5
        self.b2_poll = (2, 1)
        self.b2_steps = None
        self.b2_pre_flag = 8
        self.att_drip = 70
        self.gather_step = 24
        self.ring_d = 10
        self.__dict__.update(kw)


def split_items(lines):
    out, i = [], 0
    while i < len(lines):
        t = lines[i].strip()
        if t.startswith("s_cmp"):
            j = i + 1
            while not lines[j].strip().startswith(("s_cselect", "s_cbranch")):
                j += 1
            while j + 1 < len(lines) and lines[j + 1].strip().startswith("s_cselect"):
                j += 1
            out.append(("grp", [x.strip() for x in lines[i:j + 1]]))
            i = j + 1
        else:
            out.append(("op", t))
            i += 1
    return out


def remap_temps(lines, base=TB):
    import re

    def f(m):
        return "v%d" % (base + int(m.group(1)) - 1)
    return [re.sub(r"\bv([1-9]|1[0-5])\b", f, l) for l in lines]


class Gen:
    def __init__(self, cfg):
        self.cfg = cfg
        self.e = Em()
        self.nstamp = 0
        self.uid = 0

    def lab(self, name):
        self.uid += 1
        return f"L_{name}_{self.uid}"


    def capture(self, f, *a):
        keep = self.e
        self.e = Em()
        f(*a)
        lines = self.e.lines
        self.e = keep
        return lines

    def stamp(self, k, kind="main", wait=True):
        if not self.cfg.stamps:
            return
        if k > 0 and kind != self.cfg.stampset:
            return
        e = self.e
        assert k < 12
        e(f"s_memtime s[{64+2*k}:{65+2*k}]")
        if wait:
            e("s_waitcnt lgkmcnt(0)")
            e.lgq = []

    def rstamp(self, k, wait=True):
        if not self.cfg.stamps:
            return
        e = self.e
        e(f"s_memrealtime s[{64+2*k}:{65+2*k}]")
        if wait:
            e("s_waitcnt lgkmcnt(0)")
            e.lgq = []

    def dump_stamps(self):
        if not self.cfg.stamps:
            return
        e = self.e
        self.rstamp(11)
        e(f"s_lshl_b32 {sA}, s2, 2")
        e(f"s_add_u32 {sA}, {sA}, {sW}")
        e(f"s_lshl_b32 {sA}, {sA}, 6")
        e(f"s_add_u32 {sA}, {sA}, {WS_DBG}")
        for k in range(0, 12, 4):
            for i in range(4):
                e(f"v_mov_b32 v{i}, s{64+2*(k+i)}")
            e(f"v_mov_b32 v4, {k*4}")
            e(f"buffer_store_dwordx4 v[0:3], v4, {SRD_WS}, {sA} offen")
            e("s_waitcnt vmcnt(0)")


    def entry(self):
        e = self.e
        e(f"""
        s_cmp_ge_u32 s2, 256
        s_cbranch_scc1 L_end
        """)
        self.stamp(0, wait=False)
        self.rstamp(10, wait=False)
        e(f"""
        s_load_dwordx4 s[24:27], s[0:1], 0
        s_load_dwordx2 s[38:39], s[0:1], 64
        s_load_dwordx4 s[32:35], s[0:1], 32
        s_load_dwordx2 s[28:29], s[0:1], 16
        s_load_dwordx2 s[36:37], s[0:1], 48
        v_lshrrev_b32 v1, 6, v0
        v_and_b32 v{VL}, 63, v0
        s_and_b32 {sXCD}, s2, 7
        v_readfirstlane_b32 {sW}, v1
        s_lshr_b32 {sIDX}, s2, 3
        v_lshlrev_b32 v{VLANE16}, 4, v{VL}
        s_and_b32 {sP}, {sW}, 1
        s_lshr_b32 {sCH}, {sW}, 1
        """)
        e(f"""
        s_lshr_b32 {sA}, {sIDX}, 3
        s_lshl_b32 {sJ2}, {sXCD}, 2
        s_add_u32 {sJ2}, {sJ2}, {sA}
        s_and_b32 {sN2}, {sIDX}, 7
        """)
        e(f"""
        s_and_b32 {sA}, {sXCD}, 1
        s_lshr_b32 {sB}, {sXCD}, 1
        s_cmp_lt_u32 {sIDX}, 18
        s_cbranch_scc0 L_ffn_decode
        s_cmp_ge_u32 {sIDX}, 9
        s_cselect_b32 {sC}, 9, 0
        s_cselect_b32 {sD}, 1, 0
        s_sub_u32 {sRT}, {sIDX}, {sC}
        s_mul_i32 {sA}, {sA}, 9
        s_add_u32 {sRT}, {sRT}, {sA}
        s_lshl_b32 {sCT}, {sB}, 1
        s_add_u32 {sCT}, {sCT}, {sD}
        s_mul_i32 {sK0}, {sRT}, 57
        s_mul_i32 {sG2}, {sXCD}, 18
        s_add_u32 {sG2}, {sG2}, {sIDX}
        s_branch L_att
        L_ffn_decode:
        s_sub_u32 {sC}, {sIDX}, 18
        s_mul_i32 {sB}, {sB}, 14
        s_add_u32 {sC}, {sC}, {sB}
        s_lshr_b32 {sCT}, {sC}, 3
        s_and_b32 {sC}, {sC}, 7
        s_lshl_b32 {sA}, {sA}, 3
        s_add_u32 {sRT}, {sA}, {sC}
        s_lshl_b32 {sK0}, {sRT}, 6
        s_mul_i32 {sG2}, {sRT}, 6
        s_add_u32 {sG2}, {sG2}, {sCT}
        s_add_u32 {sG2}, {sG2}, 144
        s_cmp_eq_u32 {sCT}, 6
        s_cbranch_scc1 L_wide
        s_branch L_ffn
        """)

    def srds(self, role):
        e = self.e
        wlo, whi, wn = ("s26", "s27", 512 * 3072) if role == "att" else ("s32", "s33", 512 * 2752)
        e("s_waitcnt lgkmcnt(0)")
        e(f"""
        s_mov_b32 s4, s24
        s_and_b32 s5, s25, 0xffff
        s_mov_b32 s6, {2048*1024}
        s_mov_b32 s7, 0x00020000
        s_mov_b32 s8, {wlo}
        s_and_b32 s9, {whi}, 0xffff
        s_mov_b32 s10, {wn}
        s_mov_b32 s11, 0x00020000
        s_mov_b32 s12, s38
        s_and_b32 s13, s39, 0xffff
        s_mov_b32 s14, 0x10000000
        s_mov_b32 s15, 0x00020000
        s_mov_b32 s16, s36
        s_and_b32 s17, s37, 0xffff
        s_mov_b32 s18, {2048*1024}
        s_mov_b32 s19, 0x00020000
        """)


    def p1_params(self, role):
        if role == "wide":
            return dict(RS=448, RB=2752, NW=7, STG=45056, NB=4)
        return dict(RS=384, RB=3072 if role == "att" else 2752, NW=6, STG=40960, NB=3)


    def p1_addr_dma(self, role):
        e = self.e
        P = self.p1_params(role)
        RS, RB = P["RS"], P["RB"]
        L = f"v{VL}"
        e(f"""
        s_lshl_b32 {sA}, {sK0}, 1
        s_add_u32 {sA}, {sA}, {sCH}
        s_lshl_b32 {sB}, {sP}, 6
        s_add_u32 {sA}, {sA}, {sB}
        s_lshl_b32 {sA}, {sA}, 10
        v_lshrrev_b32 v1, 3, {L}
        v_lshrrev_b32 v2, 4, {L}
        v_and_b32 v3, 7, {L}
        v_xor_b32 v3, v3, v2
        v_lshlrev_b32 v1, 11, v1
        v_add_u32 v1, {sA}, v1
        v_lshl_add_u32 v{VXD}, v3, 4, v1
        v_xor_b32 v3, 4, v3
        v_lshl_add_u32 v{VXD+1}, v3, 4, v1
        v_add_u32 v{VXD+1}, 0x4000, v{VXD+1}
        v_add_u32 v{VXD+2}, 0x8000, v{VXD}
        v_add_u32 v{VXD+3}, 0x8000, v{VXD+1}
        s_lshl_b32 {sWX}, {sW}, 12
        s_mul_i32 {sWW}, {sW}, {1024*P['NW']}
        s_add_u32 {sWW}, {sWW}, 0x4000
        """)
        if role == "wide":
            e(f"s_mul_i32 {sB}, {sW}, {16*RB}")
            e(f"s_add_u32 {sB}, {sB}, {2*1152}")
            for j in range(7):
                e(f"""
                v_add_u32 v1, {64*j}, {L}
                v_mul_u32_u24 v2, 293, v1
                v_lshrrev_b32 v2, 13, v2
                v_mul_u32_u24 v3, 28, v2
                v_sub_u32 v1, v1, v3
                v_mul_u32_u24 v2, {RB}, v2
                v_lshl_add_u32 v1, v1, 4, v2
                v_add_u32 v{VWD+j}, {sB}, v1
                """)
        else:
            e(f"s_mul_i32 {sB}, {sW}, {16*RB}")
            e(f"s_mul_i32 {sC}, {sCT}, {128 if role == 'att' else 384}")
            e(f"s_add_u32 {sB}, {sB}, {sC}")
            for j in range(3):
                e(f"""
                v_add_u32 v1, {64*j}, {L}
                v_mul_u32_u24 v2, 171, v1
                v_lshrrev_b32 v2, 12, v2
                v_mul_u32_u24 v3, 24, v2
                v_sub_u32 v1, v1, v3
                v_lshrrev_b32 v3, 2, v1
                v_bfe_u32 v4, v2, 1, 1
                v_xor_b32 v3, v3, v4
                v_and_b32 v1, 3, v1
                v_mul_u32_u24 v2, {RB}, v2
                v_lshl_add_u32 v1, v1, 4, v2
                """)
                if role == "att":
                    e(f"""
                    v_lshrrev_b32 v4, 1, v3
                    v_and_b32 v3, 1, v3
                    v_lshl_add_u32 v1, v4, 10, v1
                    """)
                e(f"""
                v_lshl_add_u32 v1, v3, 6, v1
                v_add_u32 v{VWD+j}, {sB}, v1
                """)

    def p1_addr_lds(self, role):
        e = self.e
        P = self.p1_params(role)
        RS = P["RS"]
        L = f"v{VL}"
        e(f"""
        v_and_b32 v1, 31, {L}
        s_lshl_b32 {sA}, {sP}, 6
        v_add_u32 v1, {sA}, v1
        v_lshlrev_b32 v1, 7, v1
        v_bfe_u32 v2, {L}, 1, 3
        v_lshrrev_b32 v3, 5, {L}
        v_xor_b32 v2, v2, v3
        """)
        if role == "wide":
            e(f"s_lshl_b32 {sA}, {sCH}, 12")
            e(f"v_add_u32 v5, {sA}, v1")
            e(f"s_xor_b32 {sA}, {sA}, 0x1000")
            e(f"v_add_u32 v6, {sA}, v1")
        for s in range(4):
            e(f"v_xor_b32 v4, {2*s}, v2")
            if role == "wide":
                e(f"v_lshl_add_u32 v{VXA+s}, v4, 4, v5")
                e(f"v_lshl_add_u32 v{VXA1+s}, v4, 4, v6")
            else:
                e(f"v_lshl_add_u32 v{VXA+s}, v4, 4, v1")
        e(f"""
        v_bfe_u32 v1, {L}, 2, 2
        v_lshrrev_b32 v2, 5, {L}
        v_lshl_add_u32 v1, v2, 3, v1
        v_mul_u32_u24 v1, {RS}, v1
        v_bfe_u32 v2, {L}, 4, 1
        v_lshl_add_u32 v1, v2, 5, v1
        v_and_b32 v2, 3, {L}
        v_lshl_add_u32 v1, v2, 3, v1
        v_add_u32 v1, 0x4000, v1
        """)
        if role == "wide":
            e(f"""
            s_lshl_b32 {sA}, {sCH}, 6
            v_add_u32 v{VWA}, {sA}, v1
            v_add_u32 v{VWA2}, {6*64}, v1
            """)
        else:
            e(f"""
            v_bfe_u32 v2, {L}, 3, 1
            v_xor_b32 v2, {sCH}, v2
            v_lshl_add_u32 v{VWA}, v2, 6, v1
            """)

    def dma_list(self, role, kc):
        P = self.p1_params(role)
        base = (kc % 3) * P["STG"]
        out = []
        for j in range(4):
            out.append((f"s_add_u32 m0, {sWX}, {base + 1024*j}",
                        (f"buffer_load_dwordx4 v{VXD+j}, {SRD_X}, {sKX} offen lds", ("c", kc))))
        for j in range(P["NW"]):
            if role == "wide":
                va, so = VWD + j, sKW
            else:
                va, so = VWD + (j % 3), (sKW if j < 3 else sKW8)
            out.append((f"s_add_u32 m0, {sWW}, {base + 1024*j}",
                        (f"buffer_load_dwordx4 v{va}, {SRD_W}, {so} offen lds", ("c", kc))))
        return out

    def koff(self, role, kc):
        P = self.p1_params(role)
        out = [f"s_mov_b32 {sKX}, {kc*128}", f"s_mov_b32 {sKW}, {kc*64*P['RB']}"]
        if role != "wide":
            out.append(f"s_mov_b32 {sKW8}, {(kc*64+8)*P['RB']}")
        return out

    def issue_now(self, items):
        e = self.e
        for (a, (t, tag)) in items:
            if a:
                e(a)
                e("s_nop 0")
            e.vm(t, tag)

    def xf(self, buf, tb):
        r = XF + buf * 8 + tb * 4
        return f"v[{r}:{r+3}]"


    def wf(self, buf, blk):
        r = WF + buf * 16 + blk * 4
        return r


    def reads(self, role, s, buf):
        P = self.p1_params(role)
        RS = P["RS"]
        out = []
        if role == "wide":
            x0 = f"ds_read_b128 {self.xf(buf,0)}, v{VXA+s}"
            x1 = f"ds_read_b128 {self.xf(buf,1)}, v{VXA1+s}"
        else:
            x0 = f"ds_read_b128 {self.xf(buf,0)}, v{VXA+s}"
            x1 = f"ds_read_b128 {self.xf(buf,1)}, v{VXA+s} offset:4096"
        out.append((x0, ("x", buf, 0)))

        def wr(blk, addr, col):
            r = self.wf(buf, blk)
            for ii in range(2):
                off = (16 * s + 4 * ii) * RS + col
                out.append((f"ds_read_b64_tr_b16 v[{r+2*ii}:{r+2*ii+1}], v{addr} offset:{off}", ("w", buf, blk)))
        for blk in range(3):
            wr(blk, VWA, blk * 128)
        if role == "wide":
            wr(3, VWA2, 0)
        out.append((x1, ("x", buf, 1)))
        return out


    def acc(self, tb, blk):
        if blk == 3:
            r = 96
        else:
            r = blk * 32 + tb * 16
        return r


    def mfmas(self, role, buf, first=False):
        out = []
        order = [(0, 0), (0, 1), (0, 2)]
        if role == "wide":
            order.append((0, 3))
        order += [(1, 0), (1, 1), (1, 2)]
        for (tb, blk) in order:
            a = self.acc(tb, blk)
            w = self.wf(buf, blk)
            W = f"v[{w}:{w+3}]"
            X = self.xf(buf, tb)
            C = "0" if first else f"v[{a}:{a+15}]"
            if role == "att" and blk == 2:
                t = f"v_mfma_f32_32x32x16_bf16 v[{a}:{a+15}], {X}, {W}, {C}"
            else:
                t = f"v_mfma_f32_32x32x16_bf16 v[{a}:{a+15}], {W}, {X}, {C}"
            out.append((t, [("x", buf, tb), ("w", buf, blk)]))
        return out

    def bg_emit(self, item):
        e = self.e
        k = item[0]
        if k == "op":
            e(item[1])
        elif k == "grp":
            for t in item[1]:
                e(t)
        elif k == "vm":
            e.vm(item[1], item[2])
        elif k == "lg":
            e.lg(item[1], item[2])
        elif k == "wvm":
            e.wait_vm(item[1])
        elif k == "wlg":
            e.wait_lg(item[1])
        elif k == "call":
            item[1]()
        else:
            raise ValueError(k)

    def bg_fill(self, g, k, room, vm_ok):
        q = self.bg
        while q:
            it = q[0]
            if it[0] == "at":
                if (g, k) < it[1]:
                    return
                q.pop(0)
                continue
            cost = len(it[1]) if it[0] == "grp" else (it[2] if it[0] == "call" else 1)
            if it[0] in ("wvm", "wlg"):
                cost = 0 if self._noop_wait(it) else 1
            if it[0] == "vm":
                if not vm_ok:
                    return
                vm_ok = False
            if cost > room and room < self.cfg.cap - 1:
                return
            if room <= 0 and cost > 0:
                return
            q.pop(0)
            self.bg_emit(it)
            room -= cost

    def _noop_wait(self, it):
        e = self.e
        return (e.vm_need(it[1]) if it[0] == "wvm" else e.lg_need(it[1])) is None

    def bg_flush(self):
        while self.bg:
            it = self.bg.pop(0)
            if it[0] != "at":
                self.bg_emit(it)

    def emit_step(self, role, g, buf, rd, vms, ops, first=False):
        e = self.e
        n = 7 if role == "wide" else 6
        nv = len(vms)
        table = {0: [], 1: [3], 2: [1, 4], 3: [1, 3, 5], 4: [1, 2, 4, 5], 5: [1, 2, 3, 4, 5]}
        if n == 7:
            table = {0: [], 1: [3], 2: [2, 5], 3: [1, 3, 5], 4: [1, 3, 4, 6], 5: [1, 2, 4, 5, 6], 6: [1, 2, 3, 4, 5, 6]}
        slots = dict(zip(table[nv], vms))
        rds = [[] for _ in range(n)]
        for i, x in enumerate(rd):
            rds[min(i // 2, n - 1)].append(x)
        ops = list(ops)
        for k, (t, need) in enumerate(self.mfmas(role, buf, first)):
            e.wait_lg(need)
            e(t)
            room = self.cfg.cap
            if k in slots:
                e.vm(*slots[k][1])
                room -= 1
            for (t2, tag) in rds[k]:
                e.lg(t2, tag)
                room -= 1
            pre = slots[k + 1][0] if (k + 1) in slots else None
            if pre:
                room -= 1
            while ops and (room > 0 or k == n - 1):
                e(ops.pop(0))
                room -= 1
            self.bg_fill(g, k, room, k not in slots and (k + 1) not in slots)
            if pre:
                e(pre)

    def adv_addr(self, role, which, delta):
        out = []
        d = "0x%x" % (delta & 0xFFFFFFFF)
        for s in which.get("x", []):
            out.append(f"v_add_u32 v{VXA+s}, {d}, v{VXA+s}")
            if role == "wide":
                out.append(f"v_add_u32 v{VXA1+s}, {d}, v{VXA1+s}")
        if which.get("w"):
            out.append(f"v_add_u32 v{VWA}, {d}, v{VWA}")
            if role == "wide":
                out.append(f"v_add_u32 v{VWA2}, {d}, v{VWA2}")
        return out

    def iteration(self, role, it, vsched, hooks):
        e = self.e
        STG = self.p1_params(role)["STG"]
        last = it == 7
        delta = (((it + 1) % 3) - (it % 3)) * STG
        dl = self.dma_list(role, it + 2) if it + 2 <= 7 else []
        rest = dl[3:]
        per = [rest[0:2], rest[2:4], rest[4:]]
        for s in range(3):
            g = 4 * it + s
            rd = self.reads(role, s + 1, (s + 1) & 1)
            ops = []
            if not last:
                if s == 0:
                    pass
                if s == 1:
                    ops = self.adv_addr(role, {"x": [0, 1]}, delta)
                if s == 2:
                    ops = self.adv_addr(role, {"x": [2]}, delta)
            self.emit_step(role, g, s & 1, rd, per[s] + vsched.get(g, []), ops, first=(it == 0 and s == 0))
            if not last and s == 2:
                for t in self.adv_addr(role, {"x": [3], "w": True}, delta):
                    e(t)
        g = 4 * it + 3
        if not last:
            e.wait_vm([("c", it + 1)] + hooks.get(("wait", it), []))
            e.wait_lg_all()
            e("s_barrier")
            if ("post", it) in hooks:
                hooks[("post", it)]()
        dm = []
        ops = []
        if it + 3 <= 7:
            for t in self.koff(role, it + 3):
                e(t)
            dm = self.dma_list(role, it + 3)[:3]
        rd = [] if last else self.reads(role, 0, 0)
        self.emit_step(role, g, 1, rd, dm + vsched.get(g, []), ops)

    def get_tag(self):
        e = self.e
        e(f"v_readfirstlane_b32 {sT}, v{VE}")
        e(f"s_mul_i32 {sT}, {sT}, 0x9E3779B1")
        e(f"s_add_u32 {sT}, {sT}, 0x7F4A7C15")
        e(f"s_not_b32 {sNT}, {sT}")


    def load_epoch(self):
        e = self.e
        e(f"v_mov_b32 v{VE}, 0")
        e.vm(f"buffer_load_dword v{VE}, v{VE}, {SRD_WS}, 0 offen sc1", "E")

    def gather_addr(self, role):
        e = self.e
        L = f"v{VL}"
        e(f"v_min_u32 v2, 29, {L}")
        e(f"s_mul_i32 {sA}, {sN2}, 30")
        e(f"v_add_u32 v2, {sA}, v2")
        e(f"v_lshlrev_b32 v2, 3, v2")
        e(f"v_add_u32 v{VB2FA}, {WS_B2FLAG}, v2")
        e(f"v_and_b32 v1, 31, {L}")
        e(f"s_lshl_b32 {sA}, {sP}, 10")
        for tb in range(2):
            if role == "wide":
                e(f"s_xor_b32 {sB}, {sCH}, {tb}")
                e(f"s_lshl_b32 {sB}, {sB}, 5")
                e(f"s_add_u32 {sB}, {sB}, {sK0}")
            else:
                e(f"s_add_u32 {sB}, {sK0}, {32*tb}")
            e(f"v_add_u32 v2, {sB}, v1")
            e(f"v_min_u32 v2, 0x3ff, v2")
            e(f"v_add_u32 v2, {sA}, v2")
            e(f"v_lshlrev_b32 v2, 4, v2")
            e(f"v_add_u32 v{VGRA+tb}, {WS_ROW}, v2")
        e(f"v_lshrrev_b32 v2, 5, {L}")
        e(f"v_mul_u32_u24 v2, {NCOL}, v2")
        e(f"v_add_u32 v2, v2, v1")
        if role == "att":
            e(f"s_lshl_b32 {sA}, {sCT}, 6")
            e(f"s_lshl_b32 {sB}, {sCH}, 5")
            e(f"s_add_u32 {sA}, {sA}, {sB}")
        else:
            e(f"s_mul_i32 {sA}, {sCT}, 192")
            e(f"s_lshl_b32 {sB}, {sCH}, 5")
            e(f"s_add_u32 {sA}, {sA}, {sB}")
            e(f"s_add_u32 {sA}, {sA}, 1536")
        e(f"v_add_u32 v3, {sA}, v2")
        e(f"v_lshlrev_b32 v3, 4, v3")
        e(f"v_add_u32 v{VGCA}, {WS_COL}, v3")
        if role == "wide":
            e(f"v_add_u32 v3, {1536+1344}, v2")
            e(f"v_lshlrev_b32 v3, 4, v3")
            e(f"v_add_u32 v{VGCA2}, {WS_COL}, v3")

    def gather_loads(self, role):
        out = []
        for tb in range(2):
            out.append(f"buffer_load_dwordx4 v[{GROW+4*tb}:{GROW+4*tb+3}], v{VGRA+tb}, {SRD_WS}, 0 offen sc1")
        colstep = 512 * 16 if role == "att" else 64 * 16
        for blk in range(3):
            so = blk * colstep
            if so < 4096:
                out.append(f"buffer_load_dwordx4 v[{GCOL+4*blk}:{GCOL+4*blk+3}], v{VGCA}, {SRD_WS}, 0 offen offset:{so} sc1")
            else:
                out.append(("so", so, f"buffer_load_dwordx4 v[{GCOL+4*blk}:{GCOL+4*blk+3}], v{VGCA}, {SRD_WS}, {{so}} offen sc1"))
        if role == "wide":
            out.append(f"buffer_load_dwordx4 v[{GCOL+12}:{GCOL+15}], v{VGCA2}, {SRD_WS}, 0 offen sc1")
        return out


    def emit_gathers(self, role, tag):
        e = self.e
        for g in self.gather_loads(role):
            if isinstance(g, tuple):
                e(f"s_mov_b32 {sE}, {g[1]}")
                e.vm(g[2].format(so=sE), tag)
            else:
                e.vm(g, tag)


    def gather_items(self, role):
        out = []
        for g in self.gather_loads(role):
            if isinstance(g, tuple):
                out.append((f"s_mov_b32 {sE}, {g[1]}", (g[2].format(so=sE), "g")))
            else:
                out.append((None, (g, "g")))
        return out

    def check_gathers(self, role):
        e = self.e
        nb = 4 if role == "wide" else 3
        Lc, Lok = self.lab("gchk"), self.lab("gok")
        e(f"s_mov_b32 {sSPIN}, 0")
        e(f"{Lc}:")
        e(f"v_cmp_eq_u32 vcc, {sT}, v{GROW+3}")
        e(f"v_cmp_eq_u32 {sM}, {sT}, v{GROW+7}")
        e(f"s_and_b64 vcc, vcc, {sM}")
        for blk in range(nb):
            e(f"v_cmp_eq_u32 {sM}, {sT}, v{GCOL+4*blk+3}")
            e(f"s_and_b64 vcc, vcc, {sM}")
        e(f"s_cmp_eq_u64 vcc, exec")
        e(f"s_cbranch_scc1 {Lok}")
        e(f"s_add_u32 {sSPIN}, {sSPIN}, 1")
        e(f"s_cmp_ge_u32 {sSPIN}, {SPIN_MAX}")
        e(f"s_cbranch_scc1 {Lok}")
        save = list(e.vmq)
        self.emit_gathers(role, "g2")
        e("s_waitcnt vmcnt(0)")
        e.vmq = save
        e(f"s_branch {Lc}")
        e(f"{Lok}:")


    def check_flag(self, vreg, vaddr):
        e = self.e
        Lc, Lok = self.lab("fchk"), self.lab("fok")
        e(f"s_mov_b32 {sSPIN}, 0")
        e(f"{Lc}:")
        e(f"v_cmp_eq_u32 {HM0}, {sT}, v{vreg}")
        e(f"v_cmp_eq_u32 {HM1}, {sNT}, v{vreg+1}")
        e(f"s_and_b64 {HM0}, {HM0}, {HM1}")
        e(f"s_cmp_eq_u64 {HM0}, exec")
        e(f"s_cbranch_scc1 {Lok}")
        e(f"s_add_u32 {sSPIN}, {sSPIN}, 1")
        e(f"s_cmp_ge_u32 {sSPIN}, {SPIN_MAX}")
        e(f"s_cbranch_scc1 {Lok}")
        e(f"buffer_load_dwordx2 v[{vreg}:{vreg+1}], v{vaddr}, {SRD_WS}, 0 offen sc1")
        e("s_waitcnt vmcnt(0)")
        e(f"s_branch {Lc}")
        e(f"{Lok}:")

    def b2_setup(self):
        e = self.e
        e(f"s_lshl_b32 {sA}, {sN2}, 1")
        e(f"s_add_u32 {sA}, {sA}, {sCH}")
        e(f"s_mul_i32 {sC}, {sA}, {B2S*1024}")
        e(f"s_xor_b32 {sA}, {sA}, 1")
        e(f"s_mul_i32 {sD}, {sA}, {B2S*1024}")
        e(f"s_mul_i32 {sB}, {sW}, {18*1024}")
        e(f"s_add_u32 {sB}, {sB}, {32*1024 + WS_B2T}")
        e(f"s_add_u32 s88, {sC}, {sB}")
        e(f"s_add_u32 s89, {sD}, {sB}")
        e(f"s_mul_i32 {sDB}, {sW}, {-14*1024}")
        e(f"s_add_u32 {sDB}, {sDB}, {56*1024}")
        e(f"s_lshl_b32 {sDO}, {sW}, 12")
        e(f"s_sub_u32 {sDO}, {sDO}, {104*1024}")

    def b2_loads(self):
        out = []
        for i in range(30):
            for cbb in range(2):
                base = f"s{88+cbb}"
                pre = None
                if i < 18:
                    d = i
                    if d % 4 == 0 and d > 0:
                        pre = f"s_add_u32 {base}, {base}, 4096"
                elif i < 22:
                    d = i - 18
                    if d == 0:
                        pre = f"s_add_u32 {base}, {base}, {sDB}"
                else:
                    d = i - 22
                    if d == 0:
                        pre = f"s_add_u32 {base}, {base}, {sDO}"
                    elif d == 4:
                        pre = f"s_add_u32 {base}, {base}, 4096"
                r = 8 * i + 4 * cbb
                out.append((pre, (f"buffer_load_dwordx4 a[{r}:{r+3}], v{VLANE16}, {SRD_WS}, {base} offen offset:{(d%4)*1024} sc1", ("b2", i))))
        return out

    def oob_select(self, dst, addr, n, tmp=VT0, mask="vcc"):
        e = self.e
        e(f"v_mov_b32 v{tmp}, {OOB}")
        e(f"v_cmp_gt_u32 {mask}, {n}, v{VL}")
        e(f"v_cndmask_b32 v{dst}, v{tmp}, v{addr}, {mask}")

    def aux_addr(self, role):
        e = self.e
        L = f"v{VL}"
        e(f"""
        s_and_b32 {sA}, {sXCD}, 1
        s_lshl_b32 {sA}, {sA}, 9
        s_lshr_b32 {sB}, {sXCD}, 1
        s_lshl_b32 {sB}, {sB}, 7
        s_add_u32 {sA}, {sA}, {sB}
        s_lshl_b32 {sB}, {sIDX}, 2
        s_add_u32 {sA}, {sA}, {sB}
        s_add_u32 {sA}, {sA}, {sW}
        s_lshl_b32 {sROW}, {sA}, 11
        """)
        if role == "wide":
            return
        e(f"""
        s_mul_i32 {sA}, {sG2}, 2185
        s_lshr_b32 {sA}, {sA}, 16
        s_mul_i32 {sB}, {sA}, 30
        s_sub_u32 {sB}, {sG2}, {sB}
        s_lshl_b32 {sB}, {sB}, 2
        s_add_u32 {sB}, {sB}, {sW}
        s_mul_i32 {sC}, {sA}, {2*B2S}
        s_add_u32 {sC}, {sC}, {sB}
        s_lshl_b32 {sC}, {sC}, 10
        s_add_u32 {sB2D}, {sC}, {WS_B2T}
        s_lshl_b32 {sA}, {sA}, 7
        v_and_b32 v1, 7, {L}
        v_lshlrev_b32 v1, 4, v1
        v_add_u32 v1, {sA}, v1
        v_lshrrev_b32 v2, 3, {L}
        v_lshl_add_u32 v16, v2, 10, v1
        v_and_b32 v3, 3, v2
        v_lshrrev_b32 v2, 2, v2
        v_lshl_add_u32 v3, v2, 3, v3
        v_lshl_add_u32 v17, v3, 10, v1
        s_mov_b32 {sE}, {sB}
        """)
        if role != "ffn":
            return
        Lq, Lf, Ld = self.lab("csq"), self.lab("csf"), self.lab("csd")
        e(f"""
        s_lshr_b32 {sA}, {sXCD}, 1
        s_sub_u32 {sB}, {sIDX}, 18
        s_cmp_lt_u32 {sB}, 6
        s_cbranch_scc1 {Lq}
        s_cmp_lt_u32 {sB}, 12
        s_cbranch_scc1 {Lf}
        s_min_u32 {sA}, {sA}, 1
        s_lshl_b32 {sA}, {sA}, 1
        s_add_u32 {sA}, {sA}, {sB}
        s_add_u32 {sA}, {sA}, 30
        s_branch {Ld}
        {Lf}:
        s_mul_i32 {sA}, {sA}, 6
        s_add_u32 {sA}, {sA}, {sB}
        s_add_u32 {sA}, {sA}, 18
        s_branch {Ld}
        {Lq}:
        s_lshl_b32 {sA}, {sA}, 1
        s_and_b32 {sC}, {sB}, 1
        s_add_u32 {sA}, {sA}, {sC}
        s_lshr_b32 {sC}, {sB}, 1
        s_lshl_b32 {sC}, {sC}, 3
        s_add_u32 {sA}, {sA}, {sC}
        {Ld}:
        s_and_b32 {sB}, {sXCD}, 1
        s_lshl_b32 {sCSG}, {sA}, 6
        s_mul_i32 {sC}, {sB}, {NCOL}
        s_add_u32 {sCSG}, {sCSG}, {sC}
        s_lshl_b32 {sC}, {sW}, 4
        s_add_u32 {sCSG}, {sCSG}, {sC}
        s_lshl_b32 {sCSG}, {sCSG}, 4
        s_add_u32 {sCSG}, {sCSG}, {WS_COL}
        s_lshl_b32 {sB}, {sB}, 8
        s_lshl_b32 {sC}, {sW}, 6
        s_add_u32 {sB}, {sB}, {sC}
        v_lshrrev_b32 v1, 3, {L}
        v_add_u32 v1, {sB}, v1
        v_bfe_u32 v2, {L}, 4, 2
        v_lshlrev_b32 v2, 1, v2
        v_and_b32 v3, 7, {L}
        v_xor_b32 v2, v2, v3
        v_lshlrev_b32 v2, 4, v2
        s_lshl_b32 {sCSM}, {sW}, 13
        s_add_u32 {sCSM}, {sCSM}, {AUX_CS}
        s_cmp_ge_u32 {sA}, 24
        s_mov_b32 {sC}, 3072
        s_cselect_b32 {sCSP}, 2752, {sC}
        s_cselect_b32 {sB}, 24, 0
        s_sub_u32 {sB}, {sA}, {sB}
        s_lshl_b32 {sB}, {sB}, 7
        v_mul_u32_u24 v1, {sCSP}, v1
        v_add3_u32 v18, v1, v2, {sB}
        s_lshl_b32 {sCSP}, {sCSP}, 3
        s_mov_b32 {sD}, {sA}
        """)

    def aux_srds(self, role):
        e = self.e
        if role == "wide":
            return
        L1, L2 = self.lab("b2o"), self.lab("b2s")
        e(f"""
        s_mov_b32 s23, 0x00020000
        s_cmp_lt_u32 {sE}, 32
        s_cbranch_scc1 {L1}
        s_mov_b32 s20, s34
        s_and_b32 s21, s35, 0xffff
        s_mov_b32 s22, {1376*1024}
        s_sub_u32 {sE}, {sE}, 32
        s_lshl_b32 {sE}, {sE}, 14
        s_add_u32 {sF}, {sE}, 4096
        v_mov_b32 v16, v17
        s_branch {L2}
        {L1}:
        s_mov_b32 s20, s28
        s_and_b32 s21, s29, 0xffff
        s_mov_b32 s22, {512*1024}
        s_lshl_b32 {sE}, {sE}, 14
        s_add_u32 {sF}, {sE}, 8192
        {L2}:
        """)
        if role == "ffn":
            L1, L2 = self.lab("csw"), self.lab("css")
            e(f"""
            s_mov_b32 s95, 0x00020000
            s_cmp_ge_u32 {sD}, 24
            s_cbranch_scc1 {L1}
            s_mov_b32 s92, s26
            s_and_b32 s93, s27, 0xffff
            s_mov_b32 s94, {512*3072}
            s_branch {L2}
            {L1}:
            s_mov_b32 s92, s32
            s_and_b32 s93, s33, 0xffff
            s_mov_b32 s94, {512*2752}
            {L2}:
            s_mov_b32 {sCSO}, 0
            """)

    def b2u_dmas(self):
        e = self.e
        e(f"s_lshl_b32 {sA}, {sW}, 11")
        e(f"s_add_u32 {sA}, {sA}, {AUX_B2}")
        e(f"s_mov_b32 m0, {sA}")
        e("s_nop 0")
        e.vm(f"buffer_load_dwordx4 v16, {SRD_AUX}, {sE} offen lds", "b2u")
        e(f"s_add_u32 m0, {sA}, 1024")
        e("s_nop 0")
        e.vm(f"buffer_load_dwordx4 v16, {SRD_AUX}, {sF} offen lds", "b2u")

    def b2u_reads(self):
        e = self.e
        L = f"v{VL}"
        e(f"""
        v_lshrrev_b32 v1, 5, {L}
        v_bfe_u32 v2, {L}, 2, 2
        v_lshl_add_u32 v1, v1, 3, v2
        v_lshlrev_b32 v1, 7, v1
        v_and_b32 v2, 1, {L}
        v_lshl_add_u32 v1, v2, 5, v1
        v_bfe_u32 v2, {L}, 4, 1
        v_lshl_add_u32 v1, v2, 4, v1
        v_bfe_u32 v2, {L}, 1, 1
        v_lshl_add_u32 v1, v2, 3, v1
        s_lshl_b32 {sA}, {sW}, 11
        s_add_u32 {sA}, {sA}, {AUX_B2}
        v_add_u32 v1, {sA}, v1
        """)
        e.wait_vm("b2u")
        for nbl in range(2):
            for ii in range(2):
                r = 20 + 4 * nbl + 2 * ii
                e.lg(f"ds_read_b64_tr_b16 v[{r}:{r+1}], v1 offset:{512*ii + 64*nbl}", "b2r")

    def b2u_stores(self):
        e = self.e
        e(f"s_add_u32 {sA}, {sB2D}, {B2S*1024}")
        e.wait_lg("b2r")
        e.vm(f"buffer_store_dwordx4 v[20:23], v{VLANE16}, {SRD_WS}, {sB2D} offen sc1", "b2st")
        e.vm(f"buffer_store_dwordx4 v[24:27], v{VLANE16}, {SRD_WS}, {sA} offen sc1", "b2st")

    def cs_dmas(self):
        out = []
        for i in range(8):
            pre = [f"s_add_u32 m0, {sCSM}, {1024*i}"]
            if i:
                pre.append(f"s_add_u32 {sCSO}, {sCSO}, {sCSP}")
            out.append((pre, (f"buffer_load_dwordx4 v18, {SRD_CS}, {sCSO} offen lds", "cs")))
        return out

    def b2_publish(self):
        e = self.e
        assert "tag" in self.marks
        L = self.lab("nob2pub")
        e(f"s_cmp_eq_u32 {sW}, 0")
        e(f"s_cbranch_scc0 {L}")
        e(f"s_lshl_b32 {sH0}, {sG2}, 3")
        e(f"s_add_u32 {sH0}, {sH0}, {WS_B2FLAG}")
        e(f"v_mov_b32 v{VT0+1}, {sH0}")
        self.oob_select(VT0 + 1, VT0 + 1, 1, mask=HM0)
        e(f"v_mov_b32 v{VT0+2}, {sT}")
        e(f"v_mov_b32 v{VT0+3}, {sNT}")
        e(f"buffer_store_dwordx2 v[{VT0+2}:{VT0+3}], v{VT0+1}, {SRD_WS}, 0 offen sc1")
        e(f"{L}:")

    def rows_items(self):
        L = f"v{VL}"
        X = VROWS
        S0, Q0, S1, Q1 = 198, 199, 200, 201
        O, t1, t2, t3 = TB, 202, 203, 186
        it = [("wvm", "rows")]
        ops = [f"v_mov_b32 v{O}, 0x3f803f80"]
        for r in (S0, Q0, S1, Q1):
            ops.append(f"v_mov_b32 v{r}, 0")
        for k in range(4):
            ops.append(f"v_dot2c_f32_bf16 v{S0}, v{X+k}, v{O}")
            ops.append(f"v_dot2c_f32_bf16 v{Q0}, v{X+k}, v{X+k}")
            ops.append(f"v_dot2c_f32_bf16 v{S1}, v{X+4+k}, v{O}")
            ops.append(f"v_dot2c_f32_bf16 v{Q1}, v{X+4+k}, v{X+4+k}")
        ops += [f"s_lshr_b32 {sA}, {sROW}, 11",
                f"v_lshrrev_b32 v{t1}, 5, {L}",
                f"v_lshl_add_u32 v{t1}, v{t1}, 10, {sA}",
                f"v_lshlrev_b32 v{t1}, 4, v{t1}",
                f"v_permlane32_swap_b32 v{S0}, v{S1}",
                f"v_permlane32_swap_b32 v{Q0}, v{Q1}",
                f"v_add_u32 v{t1}, {WS_ROW}, v{t1}",
                f"v_and_b32 v{t2}, 31, {L}",
                f"v_add_f32 v{S0}, v{S0}, v{S1}",
                f"v_add_f32 v{Q0}, v{Q0}, v{Q1}",
                f"v_mov_b32 v{t3}, {OOB}",
                f"v_cmp_eq_u32 vcc, 0, v{t2}",
                f"v_permlane16_swap_b32 v{S0}, v{Q0}",
                f"v_cndmask_b32 v{t1}, v{t3}, v{t1}, vcc",
                f"v_mov_b32 v{O+3}, {sT}",
                f"v_add_f32 v{S0}, v{S0}, v{Q0}"]
        for rot in (8, 4, 2, 1):
            ops.append(f"v_add_f32_dpp v{S0}, v{S0}, v{S0} row_ror:{rot} row_mask:0xf bank_mask:0xf")
        ops += [f"v_mov_b32 v{Q0}, v{S0}",
                f"v_permlane16_swap_b32 v{S0}, v{Q0}",
                f"v_mul_f32 v{S0}, {hexf(-1.0/512)}, v{S0}",
                f"v_mul_f32 v{Q0}, {hexf(1.0/512)}, v{Q0}",
                f"v_fma_f32 v{Q0}, -v{S0}, v{S0}, v{Q0}",
                f"v_cvt_pk_bf16_f32 v{O}, v{S0}, v{S0}",
                f"v_max_f32 v{Q0}, 0, v{Q0}",
                f"v_and_b32 v{t2}, 0xffff0000, v{O}",
                f"v_add_f32 v{Q0}, {hexf(1e-5)}, v{Q0}",
                f"v_sub_f32 v{t2}, v{S0}, v{t2}",
                f"v_rsq_f32 v{O+2}, v{Q0}",
                f"v_cvt_pk_bf16_f32 v{O+1}, v{t2}, 0"]
        it += [("op", x) for x in ops]
        it.append(("vm", f"buffer_store_dwordx4 v[{O}:{O+3}], v{t1}, {SRD_WS}, 0 offen sc1", "rowst"))
        return it

    def cs_items(self):
        L = f"v{VL}"
        t1, t2, t3 = 186, 187, 188
        D = 192
        G = TB
        ops = [f"v_bfe_u32 v{t1}, {L}, 2, 2",
               f"v_lshrrev_b32 v{t2}, 4, {L}",
               f"v_lshl_add_u32 v{t1}, v{t2}, 2, v{t1}",
               f"v_bfe_u32 v{t2}, v{t1}, 1, 2",
               f"v_lshlrev_b32 v{t2}, 1, v{t2}",
               f"v_bfe_u32 v{t3}, {L}, 1, 1",
               f"s_lshl_b32 {sA}, {sW}, 1",
               f"v_or_b32 v{t3}, {sA}, v{t3}",
               f"v_xor_b32 v{t2}, v{t2}, v{t3}",
               f"v_lshlrev_b32 v{t2}, 4, v{t2}",
               f"v_lshl_add_u32 v{t1}, v{t1}, 7, v{t2}",
               f"v_and_b32 v{t2}, 1, {L}",
               f"v_lshl_add_u32 v{t1}, v{t2}, 3, v{t1}",
               f"v_add_u32 v{t1}, {AUX_CS}, v{t1}"]
        it = [("op", x) for x in ops]
        for i in range(4):
            it.append(("op", f"v_mov_b32 v{ONES+i}, 0x3f803f80"))
        for i in range(16):
            it.append(("lg", f"ds_read_b64_tr_b16 a[{CSA+2*i}:{CSA+2*i+1}], v{t1} offset:{2048*i}", ("cs", i // 2)))
        it.append(("op", f"v_lshl_add_u32 v{t2}, {L}, 4, {sCSG}"))
        it.append(("op", f"v_mov_b32 v{t3}, {OOB}"))
        it.append(("op", f"v_cmp_gt_u32 vcc, 16, {L}"))
        it.append(("op", f"v_cndmask_b32 v{t3}, v{t3}, v{t2}, vcc"))
        for m in range(8):
            d = D + 4 * (m & 1)
            c = "0" if m < 2 else f"v[{d}:{d+3}]"
            it.append(("wlg", ("cs", m)))
            it.append(("op", f"v_mfma_f32_16x16x32_bf16 v[{d}:{d+3}], v[{ONES}:{ONES+3}], a[{CSA+4*m}:{CSA+4*m+3}], {c}"))
        ops = [f"v_mov_b32 v{G+2}, {sNT}",
               f"v_mov_b32 v{G+3}, {sT}",
               f"v_add_f32 v{D}, v{D}, v{D+4}",
               f"v_cvt_pk_bf16_f32 v{D+1}, v{D}, v{D}",
               f"v_and_b32 v{D+1}, 0xffff0000, v{D+1}",
               f"v_sub_f32 v{D+2}, v{D}, v{D+1}",
               f"v_lshrrev_b32 v{G+1}, 16, v{D+1}",
               f"v_cvt_pk_bf16_f32 v{G}, v{D+1}, v{D+2}"]
        it += [("op", x) for x in ops]
        it.append(("vm", f"buffer_store_dwordx4 v[{G}:{G+3}], v{t3}, {SRD_WS}, 0 offen sc1", "colst"))
        return it

    def setup_items(self, f, *a):
        return split_items(remap_temps(self.capture(f, *a)))

    def phase1(self, role):
        e = self.e
        cfg = self.cfg
        e(f"L_{role}:")
        e.vmq, e.lgq = [], []
        self.p1_addr_dma(role)
        self.aux_addr(role)
        self.srds(role)
        self.aux_srds(role)
        self.stamp(1, "pro")
        self.load_epoch()
        if role != "wide":
            self.b2u_dmas()
        for t in self.koff(role, 0):
            e(t)
        self.issue_now(self.dma_list(role, 0))
        for t in self.koff(role, 1):
            e(t)
        self.issue_now(self.dma_list(role, 1))
        self.stamp(2, "pro")
        e.vm(f"buffer_load_dwordx4 v[{VROWS}:{VROWS+3}], v{VLANE16}, {SRD_X}, {sROW} offen", "rows")
        e.vm(f"buffer_load_dwordx4 v[{VROWS+4}:{VROWS+7}], v{VLANE16}, {SRD_X}, {sROW} offen offset:1024", "rows")
        self.p1_addr_lds(role)
        cs = self.cs_dmas() if role == "ffn" else []

        def issue_cs(lst):
            for (pre, (t, tag)) in lst:
                for p in pre:
                    e(p)
                e("s_nop 0")
                e.vm(t, tag)
        if role != "wide":
            self.b2u_reads()
            issue_cs(cs[:4])
            self.b2u_stores()
            issue_cs(cs[4:])
        self.stamp(3, "pro")
        e.wait_vm(("c", 0))
        e("s_barrier")
        self.stamp(1)
        self.stamp(4, "pro")
        for t in self.koff(role, 2):
            e(t)
        self.issue_now(self.dma_list(role, 2)[:3])
        for (t, tag) in self.reads(role, 0, 0):
            e.lg(t, tag)

        self.marks = set()

        def mark(name):
            return ("call", lambda: self.marks.add(name), 0)
        self.mark_item = mark
        bg = [("wvm", "E")] + split_items(self.capture(self.get_tag)) + [mark("tag")]
        bg += self.setup_items(self.gather_addr, role) + [mark("gaddr")]
        bg += self.setup_items(self.b2_setup) + [mark("b2s")]
        bg.append(("at", (3, 0)))
        bg += self.rows_items()
        if role == "ffn":
            bg += self.cs_items()
        bg += self.setup_items(self.p2_setup, role)
        if role == "att":
            bg += self.setup_items(self.att_consts)
        bg.append(mark("setup"))
        gs = cfg.gather_step
        bg.append(("at", (28, 2)))
        bg.append(("wvm", "g"))
        bg.append(("call", lambda: self.check_gathers(role), 1))
        self.bg = bg

        b2 = self.b2_loads()
        vs = {}
        pit, pst = cfg.b2_poll
        vs.setdefault(4 * pit + pst, []).append(
            (None, (f"buffer_load_dwordx2 v[{VFLAG}:{VFLAG+1}], v{VB2FA}, {SRD_WS}, 0 offen sc1", "b2f")))
        gi = self.gather_items(role)
        vs.setdefault(gs, []).extend(gi[:3])
        vs.setdefault(gs + 1, []).extend(gi[3:])
        steps = cfg.b2_steps or {15: 1, 16: 1, 17: 2, 18: 1, 19: 1, 20: 1, 21: 2, 22: 1, 23: 4, 24: 1, 25: 1, 26: 4, 27: 3,
                                 28: 4, 29: 3, 30: 4, 31: 3}
        first_b2 = 4 * (pit + 1) + 3
        nb = 0
        for g in sorted(int(x) for x in steps):
            assert g >= first_b2, (g, first_b2)
            c = steps.get(g, steps.get(str(g)))
            vs.setdefault(g, []).extend(b2[nb:nb + c])
            nb += c
        self.b2_rest = b2[nb:]
        hooks = {("wait", 0): ["b2st", "cs", "rows"], ("wait", pit + 1): ["b2f"],
                 ("post", pit + 1): lambda: self.check_flag(VFLAG, VB2FA)}
        if role != "wide":
            hooks[("post", 0)] = self.b2_publish
        for it in range(8):
            if it == gs // 4:
                assert "setup" in self.marks, "set-up code must be finished before the gathers overwrite its temporaries"
            if it == pit:
                assert "gaddr" in self.marks
            if it == pit + 1:
                assert "b2s" in self.marks
            self.iteration(role, it, vs, hooks)
            if it in (1, 3, 5):
                self.stamp(2 + it // 2)
            if it < 4:
                self.stamp(5 + it, "pro")
        self.bg_flush()
        self.stamp(5)
        if cfg.stop == "p1gemm":
            self.dump_acc(role)
            return
        if role == "att":
            self.att_epilogue()
        else:
            self.ffn_epilogue(role)
        self.stamp(6)

    def dump_acc(self, role):
        e = self.e
        e("s_nop 15")
        e(f"s_lshl_b32 {sA}, s2, 2")
        e(f"s_add_u32 {sA}, {sA}, {sW}")
        e(f"s_mul_i32 {sA}, {sA}, {112*256}")
        e(f"s_add_u32 {sA}, {sA}, {WS_DBG+0x100000}")
        e(f"v_lshlrev_b32 v{VT0}, 2, v{VL}")
        for r in range(112 if role == "wide" else 96):
            e(f"buffer_store_dword v{r}, v{VT0}, {SRD_WS}, {sA} offen")
            e(f"s_add_u32 {sA}, {sA}, 256")
        e("s_waitcnt vmcnt(0)")
        e("s_branch L_fin")


    def p2_setup(self, role):
        e = self.e
        L = f"v{VL}"
        if role == "att":
            e(f"s_lshl_b32 {sA}, {sRT}, 3")
            e(f"s_add_u32 {sA}, {sA}, {sCT}")
        else:
            e(f"s_mul_i32 {sA}, {sRT}, 7")
            e(f"s_add_u32 {sA}, {sA}, {sCT}")
            e(f"s_add_u32 {sA}, {sA}, 144")
        e(f"s_lshl_b32 {sA}, {sA}, 3")
        e(f"s_add_u32 {sA}, {sA}, {WS_FLAG}")
        e(f"v_mov_b32 v1, {sA}")
        self.oob_select(VFST, 1, 1, tmp=7)
        e(f"""
        s_lshr_b32 {sA}, {sJ2}, 1
        s_mul_i32 {sA}, {sA}, 7
        s_add_u32 {sA}, {sA}, 144
        v_min_u32 v1, 5, {L}
        v_add_u32 v1, {sA}, v1
        v_lshlrev_b32 v1, 3, v1
        v_add_u32 v{VFA}, {WS_FLAG}, v1
        s_lshl_b32 {sA}, {sA}, 3
        s_add_u32 {sA}, {sA}, {WS_FLAG + 48}
        v_mov_b32 v{VFW}, {sA}
        """)
        e(f"""
        s_lshl_b32 {sA}, {sJ2}, 5
        s_add_u32 {sB}, {sA}, 24
        s_mul_i32 {sB}, {sB}, 575
        s_lshr_b32 {sB}, {sB}, 15
        s_max_u32 {sA}, {sA}, 7
        s_sub_u32 {sA}, {sA}, 7
        s_mul_i32 {sA}, {sA}, 575
        s_lshr_b32 {sA}, {sA}, 15
        s_sub_u32 {sB}, {sB}, {sA}
        v_bfe_u32 v1, {L}, 1, 1
        v_mul_u32_u24 v1, {sB}, v1
        v_add_u32 v1, {sA}, v1
        v_and_b32 v2, 1, {L}
        v_lshl_add_u32 v1, v1, 3, v2
        s_lshl_b32 {sA}, {sW}, 1
        v_add_u32 v1, {sA}, v1
        v_lshlrev_b32 v1, 3, v1
        v_add_u32 v{VFO}, {WS_FLAG}, v1
        """)
        e(f"""
        v_and_b32 v1, 31, {L}
        v_lshrrev_b32 v2, 5, {L}
        s_lshl_b32 {sA}, {sJ2}, 6
        s_add_u32 {sA}, {sA}, {sP}
        s_lshl_b32 {sA}, {sA}, 10
        s_lshl_b32 {sB}, {sN2}, 7
        s_add_u32 {sA}, {sA}, {sB}
        s_lshl_b32 {sB}, {sCH}, 6
        s_add_u32 {sA}, {sA}, {sB}
        v_lshlrev_b32 v3, 11, v1
        v_lshl_add_u32 v3, v2, 5, v3
        v_add_u32 v{VRES}, {sA}, v3
        s_lshl_b32 {sA}, {sP}, 10
        s_lshl_b32 {sB}, {sJ2}, 5
        s_add_u32 {sA}, {sA}, {sB}
        v_add_u32 v1, {sA}, v1
        v_lshlrev_b32 v1, 4, v1
        v_add_u32 v{VRS2}, {WS_ROW}, v1
        s_mul_i32 {sA}, {sP}, {NSTEP*1024}
        v_add_u32 v{VA0}, {sA}, v{VLANE16}
        s_xor_b32 {sA}, {sP}, 1
        s_mul_i32 {sA}, {sA}, {NSTEP*1024}
        v_add_u32 v{VA1}, {sA}, v{VLANE16}
        """)
        e(f"""
        s_lshl_b32 {sA}, {sJ2}, 1
        s_mul_i32 {sA}, {sA}, {NSTEP*1024}
        s_add_u32 {sA}, {sA}, {WS_ACT}
        s_mul_i32 {sB}, {sW}, 18
        s_add_u32 {sB}, {sB}, 32
        s_lshl_b32 {sC}, {sB}, 10
        s_add_u32 {sAH}, {sA}, {sC}
        s_lshl_b32 {sB}, {sW}, 2
        s_add_u32 {sB}, {sB}, 104
        s_lshl_b32 {sC}, {sB}, 10
        s_add_u32 {sAB}, {sA}, {sC}
        s_add_u32 {sC}, {sB}, 2
        s_min_u32 {sC}, {sC}, {NSTEP-1}
        s_lshl_b32 {sC}, {sC}, 10
        s_add_u32 {sX20}, {sA}, {sC}
        s_add_u32 {sC}, {sB}, 3
        s_min_u32 {sC}, {sC}, {NSTEP-1}
        s_lshl_b32 {sC}, {sC}, 10
        s_add_u32 {sX21}, {sA}, {sC}
        s_lshl_b32 {sC}, {sW}, 13
        s_add_u32 {sAO}, {sA}, {sC}
        """)

    def att_consts(self):
        e = self.e
        L = f"v{VL}"
        e(f"v_and_b32 v1, 15, {L}")
        e(f"v_lshrrev_b32 v2, 4, {L}")
        e(f"v_lshlrev_b32 v2, 2, v2")
        e(f"v_sub_u32 v1, v1, v2")
        e(f"v_mov_b32 v4, {hexf(-1e30)}")
        e(f"v_mov_b32 v{MASKC}, 0")
        e(f"v_mov_b32 v{MASKC+1}, 0")
        for r in range(4):
            e(f"v_subrev_u32 v3, {r}, v1")
            e(f"v_cmp_gt_u32 vcc, 8, v3")
            e(f"v_cmp_ge_i32 {sM}, -9, v3")
            e(f"v_cndmask_b32 v{BIASC+r}, v4, 0, vcc")
            e(f"v_cndmask_b32 v{BIASP+r}, v4, 0, {sM}")
            e(f"v_mov_b32 v5, {'0xffff' if r % 2 == 0 else '0xffff0000'}")
            e(f"v_cndmask_b32 v5, 0, v5, {sM}")
            e(f"v_or_b32 v{MASKC+r//2}, v{MASKC+r//2}, v5")
        for i in range(4):
            e(f"v_mov_b32 v{ONES+i}, 0x3f803f80")
        e(f"v_and_b32 v1, 31, {L}")
        e(f"v_lshrrev_b32 v2, 5, {L}")
        e(f"v_lshlrev_b32 v2, 9, v2")
        e(f"s_lshl_b32 {sA}, {sCT}, 2")
        e(f"s_lshl_b32 {sB}, {sCH}, 1")
        e(f"s_add_u32 {sA}, {sA}, {sB}")
        e(f"s_mul_i32 {sB}, {sP}, {NSTEP}")
        e(f"s_add_u32 {sA}, {sA}, {sB}")
        e(f"s_lshl_b32 {sA}, {sA}, 10")
        e(f"s_add_u32 {sA}, {sA}, {WS_ACT}")
        e(f"s_cmp_eq_u32 {sRT}, 0")
        e(f"s_cselect_b32 {sB}, 0, 7")
        e(f"v_mov_b32 v6, {OOB}")
        e(f"s_movk_i32 {sC}, 0x400")
        for tb in range(2):
            e(f"v_add_u32 v3, {32*tb}, v1")
            e(f"v_add_u32 v4, {sK0}, v3")
            e(f"v_cmp_le_u32 vcc, {sB}, v3")
            e(f"v_cmp_gt_u32 {sM}, {sC}, v4")
            e(f"s_and_b64 vcc, vcc, {sM}")
            e(f"v_lshrrev_b32 v5, 5, v4")
            e(f"v_mul_u32_u24 v5, {2*NSTEP*1024}, v5")
            e(f"v_and_b32 v4, 31, v4")
            e(f"v_lshl_add_u32 v4, v4, 4, v2")
            e(f"v_add3_u32 v4, v4, v5, {sA}")
            e(f"v_cndmask_b32 v{VOST+tb}, v6, v4, vcc")
        e(f"s_lshl_b32 {sA}, {sW}, 8")
        e(f"s_add_u32 {sA}, {sA}, {LDS_RV}")
        e(f"v_lshl_add_u32 v{VRVW}, {L}, 2, {sA}")
        e(f"v_lshrrev_b32 v2, 5, {L}")
        e(f"v_lshl_add_u32 v{VRVR}, v2, 4, {sA}")


    def corr_mfmas(self, role):
        out = []
        tiles = [(tb, blk) for blk in range(3) for tb in range(2)]
        if role == "wide":
            tiles.append((0, 3))
        for (tb, blk) in tiles:
            a = self.acc(tb, blk)
            R = f"v[{GROW+4*tb}:{GROW+4*tb+1}]"
            C = f"v[{GCOL+4*blk}:{GCOL+4*blk+1}]"
            if role == "att" and blk == 2:
                out.append(f"v_mfma_f32_32x32x8_bf16 v[{a}:{a+15}], {R}, {C}, v[{a}:{a+15}]")
            else:
                out.append(f"v_mfma_f32_32x32x8_bf16 v[{a}:{a+15}], {C}, {R}, v[{a}:{a+15}]")
        return out


    def b2_drip(self, n):
        e = self.e
        for _ in range(n):
            if not self.b2_rest:
                return
            pre, (t, tag) = self.b2_rest.pop(0)
            if pre:
                e(pre)
            e.vm(t, tag)


    def publish_act(self, npre):
        e = self.e
        self.b2_drip(npre)
        e.wait_vm("st")
        e("s_barrier")
        L = self.lab("nopub")
        e(f"s_cmp_eq_u32 {sW}, 0")
        e(f"s_cbranch_scc0 {L}")
        e(f"v_mov_b32 v{VT0}, {sT}")
        e(f"v_mov_b32 v{VT0+1}, {sNT}")
        e(f"buffer_store_dwordx2 v[{VT0}:{VT0+1}], v{VFST}, {SRD_WS}, 0 offen sc1")
        e(f"{L}:")
        e.vm(f"buffer_load_dwordx2 v[{VFLAG}:{VFLAG+1}], v{VFA}, {SRD_WS}, 0 offen sc1", "hf")
        self.b2_drip(999)

    def ffn_epilogue(self, role):
        e = self.e
        for t in self.corr_mfmas(role):
            e(t)
        for tb in range(2):
            if role == "wide":
                e(f"s_xor_b32 {sA}, {sCH}, {tb}")
                e(f"s_lshl_b32 {sB}, {sRT}, 1")
                e(f"s_add_u32 {sA}, {sA}, {sB}")
            else:
                e(f"s_lshl_b32 {sA}, {sRT}, 1")
                e(f"s_add_u32 {sA}, {sA}, {tb}")
            e(f"s_lshl_b32 {sA}, {sA}, 1")
            e(f"s_add_u32 {sA}, {sA}, {sP}")
            e(f"s_mul_i32 {sA}, {sA}, {NSTEP}")
            e(f"s_mul_i32 {sB}, {sCT}, 12")
            e(f"s_add_u32 {sA}, {sA}, {sB}")
            e(f"s_add_u32 {sA}, {sA}, 32")
            dst = sE if tb == 0 else sF
            if role == "wide" and tb == 0:
                e(f"s_add_u32 {sD}, {sA}, 12")
                e(f"s_lshl_b32 {sD}, {sD}, 10")
                e(f"s_add_u32 {sD}, {sD}, {WS_ACT}")
            e(f"s_lshl_b32 {sB}, {sCH}, 1")
            e(f"s_add_u32 {sA}, {sA}, {sB}")
            e(f"s_lshl_b32 {sA}, {sA}, 10")
            e(f"s_add_u32 {dst}, {sA}, {WS_ACT}")
        tiles = [(tb, blk) for blk in range(3) for tb in range(2)]
        if role == "wide":
            tiles.append((0, 3))
        T = 112
        k = 0
        for (tb, blk) in tiles:
            a = self.acc(tb, blk)
            so = sD if blk == 3 else (sE if tb == 0 else sF)
            for half in range(2):
                r = T + 4 * (k % 8)
                k += 1
                for i in range(4):
                    e(f"v_cvt_pk_bf16_f32 v{r+i}, v{a+8*half+2*i}, v{a+8*half+2*i+1}")
                for i in range(4):
                    e(f"v_pk_max_i16 v{r+i}, v{r+i}, 0")
                e.vm(f"buffer_store_dwordx4 v[{r}:{r+3}], v{VLANE16}, {SRD_WS}, {so} offen offset:{1024*half} sc1", "st")
            if blk < 2:
                e(f"s_add_u32 {so}, {so}, 4096")
        self.publish_act(self.cfg.b2_pre_flag)


    def drip_hook(self, line):
        t = line.strip()
        if t.endswith(":") or t.startswith(("s_cmp", "s_waitcnt")):
            return
        if t.startswith("v_mfma"):
            c = 12
        elif t.startswith(("v_exp", "v_rcp", "v_pk_")):
            c = 8
        else:
            c = 5
        self.drip_acc += c
        if self.drip_acc >= self.cfg.att_drip:
            self.drip_acc = 0
            self.b2_drip(1)

    def att_epilogue(self):
        e = self.e
        QP, KP, VH = 96, 112, 128
        RV = 144
        RQ, CQ, C64, R64 = 252, 176, 180, 206
        R = [GROW + 2, GROW + 6]
        corr = self.corr_mfmas("att")
        self.drip_acc = 0
        e.hook = self.drip_hook
        e(f"s_mov_b32 s62, 0")
        e(f"s_mov_b32 s63, -1")
        e(f"v_cndmask_b32 v{R64}, v{R[0]}, v{R[1]}, {sM}")
        e(corr[0])
        e.lg(f"ds_write_b32 v{VRVW}, v{R64}", "rvw")
        e(corr[1])
        for tb in range(2):
            for a in range(4):
                e.lg(f"ds_read_b128 v[{RV+16*tb+4*a}:{RV+16*tb+4*a+3}], v{VRVR} offset:{128*tb+32*a}", ("rv", tb))
            e(corr[2 + tb])
        e(f"v_mul_f32 v{C64}, {hexf(0.25*LOG2E)}, v{R64}")
        for tb in range(2):
            e(f"v_mov_b32 v{RQ+2*tb}, v{R[tb]}")
            e(f"v_mov_b32 v{RQ+2*tb+1}, v{R[tb]}")
        e(corr[4])
        e(corr[5])
        for tb in range(2):
            e(f"v_permlane16_swap_b32 v{RQ+2*tb}, v{RQ+2*tb+1}")
        for b in range(4):
            e(f"v_mul_f32 v{CQ+b}, {hexf(0.25*LOG2E)}, v{RQ+b}")
        for tb in range(2):
            for hd in range(2):
                a, n = self.acc(tb, 0) + 8 * hd, QP + 8 * tb + 4 * hd
                for i in range(4):
                    e(f"v_cvt_pk_bf16_f32 v{n+i}, v{a+2*i}, v{a+2*i+1}")
        for tb in range(2):
            for hd in range(2):
                n = QP + 8 * tb + 4 * hd
                e(f"v_permlane16_swap_b32 v{n}, v{n+2}")
                e(f"v_permlane16_swap_b32 v{n+1}, v{n+3}")
        for tb in range(2):
            a = self.acc(tb, 1)
            for i in range(8):
                e(f"v_pk_mul_f32 v[{a+2*i}:{a+2*i+1}], v[{a+2*i}:{a+2*i+1}], v[{R[tb]}:{R[tb]+1}] op_sel_hi:[1,0]")
        for tb in range(2):
            for hd in range(2):
                a, n = self.acc(tb, 1) + 8 * hd, KP + 8 * tb + 4 * hd
                for i in range(4):
                    e(f"v_cvt_pk_bf16_f32 v{n+i}, v{a+2*i}, v{a+2*i+1}")
        for tb in range(2):
            for hd in range(2):
                n = KP + 8 * tb + 4 * hd
                e(f"v_permlane16_swap_b32 v{n}, v{n+2}")
                e(f"v_permlane16_swap_b32 v{n+1}, v{n+3}")

        def op2(base, hd, blk):
            r = base + 8 * (blk >> 1) + 4 * hd + 2 * (blk & 1)
            return f"v[{r}:{r+1}]"

        def SC(hd, blk):
            return 28 * hd + 4 * blk

        def SP(hd, blk):
            return 28 * hd + 16 + 4 * (blk - 1)
        smf = []
        for hd in range(2):
            for blk in range(4):
                d = SC(hd, blk)
                smf.append(f"v_mfma_f32_16x16x16_bf16 v[{d}:{d+3}], {op2(KP,hd,blk)}, {op2(QP,hd,blk)}, v[{BIASC}:{BIASC+3}]")
                if blk:
                    d = SP(hd, blk)
                    smf.append(f"v_mfma_f32_16x16x16_bf16 v[{d}:{d+3}], {op2(KP,hd,blk-1)}, {op2(QP,hd,blk)}, v[{BIASP}:{BIASP+3}]")
        vops = []
        for tb in range(2):
            a = self.acc(tb, 2)
            for i in range(8):
                vops.append((("rv", tb), f"v_pk_mul_f32 v[{a+2*i}:{a+2*i+1}], v[{a+2*i}:{a+2*i+1}], v[{RV+16*tb+2*i}:{RV+16*tb+2*i+1}]"))
        for tb in range(2):
            for eb in range(2):
                blk = 2 * tb + eb
                a = self.acc(tb, 2) + 8 * eb
                X, Y = VH + 2 * blk, VH + 8 + 2 * blk
                vops.append((None, f"v_cvt_pk_bf16_f32 v{X}, v{a}, v{a+1}"))
                vops.append((None, f"v_cvt_pk_bf16_f32 v{X+1}, v{a+2}, v{a+3}"))
                vops.append((None, f"v_cvt_pk_bf16_f32 v{Y}, v{a+4}, v{a+5}"))
                vops.append((None, f"v_cvt_pk_bf16_f32 v{Y+1}, v{a+6}, v{a+7}"))
        for blk in range(4):
            X, Y = VH + 2 * blk, VH + 8 + 2 * blk
            vops.append((None, f"v_permlane32_swap_b32 v{X}, v{Y}"))
            vops.append((None, f"v_permlane32_swap_b32 v{X+1}, v{Y+1}"))
        for blk in range(4):
            X, Y = VH + 2 * blk, VH + 8 + 2 * blk
            vops.append((None, f"v_permlane16_swap_b32 v{X}, v{Y}"))
            vops.append((None, f"v_permlane16_swap_b32 v{X+1}, v{Y+1}"))
        vi = 0
        for m in smf:
            e(m)
            for _ in range(2):
                if vi < len(vops):
                    t, o = vops[vi]
                    if t:
                        e.wait_lg(t)
                    e(o)
                    vi += 1
        while vi < len(vops):
            t, o = vops[vi]
            if t:
                e.wait_lg(t)
            e(o)
            vi += 1
        MX = 64
        for hd in range(2):
            for blk in range(1, 4):
                for r in range(4):
                    e(f"v_max_f32 v{SC(hd,blk)+r}, v{SC(hd,blk)+r}, v{SP(hd,blk)+r}")
        for hd in range(2):
            for blk in range(4):
                s = SC(hd, blk)
                e(f"v_max3_f32 v{MX+4*hd+blk}, v{s}, v{s+1}, v{s+2}")
        for hd in range(2):
            for blk in range(4):
                s = SC(hd, blk)
                e(f"v_max_f32 v{MX+4*hd+blk}, v{MX+4*hd+blk}, v{s+3}")
        for hd in range(2):
            m = MX + 4 * hd
            e(f"v_permlane16_swap_b32 v{m}, v{m+1}")
            e(f"v_permlane16_swap_b32 v{m+2}, v{m+3}")
        for hd in range(2):
            m = MX + 4 * hd
            e(f"v_max_f32 v{m}, v{m}, v{m+1}")
            e(f"v_max_f32 v{m+2}, v{m+2}, v{m+3}")
        for hd in range(2):
            m = MX + 4 * hd
            e(f"v_permlane32_swap_b32 v{m}, v{m+2}")
        for hd in range(2):
            m = MX + 4 * hd
            e(f"v_max_f32 v{m}, v{m}, v{m+2}")
        for hd in range(2):
            m = MX + 4 * hd
            e(f"v_mul_f32 v{m}, -v{m}, v{C64}")
        for hd in range(2):
            m = MX + 4 * hd
            e(f"v_mov_b32 v{m+2}, v{m}")
        for hd in range(2):
            m = MX + 4 * hd
            e(f"v_permlane32_swap_b32 v{m}, v{m+2}")
        for hd in range(2):
            m = MX + 4 * hd
            e(f"v_mov_b32 v{m+1}, v{m}")
            e(f"v_mov_b32 v{m+3}, v{m+2}")
        for hd in range(2):
            m = MX + 4 * hd
            e(f"v_permlane16_swap_b32 v{m}, v{m+1}")
            e(f"v_permlane16_swap_b32 v{m+2}, v{m+3}")
        def PT(hd, blk):
            return 96 + 4 * (4 * hd + blk)

        def OO(hd, blk):
            return 144 + 4 * (4 * hd + blk)

        for hd in range(2):
            for blk in range(4):
                s = SC(hd, blk)
                for r in range(4):
                    e(f"v_fma_f32 v{s+r}, v{s+r}, v{CQ+blk}, v{MX+4*hd+blk}")
        for hd in range(2):
            for blk in range(4):
                s = SC(hd, blk)
                for r in range(4):
                    e(f"v_exp_f32 v{s+r}, v{s+r}")
        for hd in range(2):
            for blk in range(4):
                s, p = SC(hd, blk), PT(hd, blk)
                e(f"v_cvt_pk_bf16_f32 v{p+2}, v{s}, v{s+1}")
                e(f"v_cvt_pk_bf16_f32 v{p+3}, v{s+2}, v{s+3}")
        for hd in range(2):
            for blk in range(1, 4):
                p = PT(hd, blk)
                e(f"v_and_b32 v{p}, v{p+2}, v{MASKC}")
                e(f"v_and_b32 v{p+1}, v{p+3}, v{MASKC+1}")
            for blk in range(1, 4):
                p = PT(hd, blk)
                e(f"v_xor_b32 v{p+2}, v{p+2}, v{p}")
                e(f"v_xor_b32 v{p+3}, v{p+3}, v{p+1}")
        def SUMR(hd, blk):
            return 4 * (4 * hd + blk)
        for hd in range(2):
            for blk in range(4):
                p, o, s = PT(hd, blk), OO(hd, blk), SUMR(hd, blk)
                vh = VH + 8 * hd
                if blk == 0:
                    e(f"v_mfma_f32_16x16x16_bf16 v[{s}:{s+3}], v[{ONES}:{ONES+1}], v[{p+2}:{p+3}], 0")
                    e(f"v_mfma_f32_16x16x16_bf16 v[{o}:{o+3}], v[{vh}:{vh+1}], v[{p+2}:{p+3}], 0")
                else:
                    e(f"v_mfma_f32_16x16x32_bf16 v[{s}:{s+3}], v[{ONES}:{ONES+3}], v[{p}:{p+3}], 0")
                    e(f"v_mfma_f32_16x16x32_bf16 v[{o}:{o+3}], v[{vh+2*(blk-1)}:{vh+2*(blk-1)+3}], v[{p}:{p+3}], 0")
        for hd in range(2):
            for blk in range(4):
                s = SUMR(hd, blk)
                e(f"v_mul_f32 v{s}, v{s}, v{RQ+blk}")
        for hd in range(2):
            for blk in range(4):
                s = SUMR(hd, blk)
                e(f"v_rcp_f32 v{s}, v{s}")
        for hd in range(2):
            for blk in range(4):
                s, o = SUMR(hd, blk), OO(hd, blk)
                e(f"v_pk_mul_f32 v[{o}:{o+1}], v[{o}:{o+1}], v[{s}:{s+1}] op_sel_hi:[1,0]")
                e(f"v_pk_mul_f32 v[{o+2}:{o+3}], v[{o+2}:{o+3}], v[{s}:{s+1}] op_sel_hi:[1,0]")
        OP = 64
        for hd in range(2):
            for blk in range(4):
                o = OO(hd, blk)
                n = OP + 4 * (2 * hd + (blk >> 1)) + 2 * (blk & 1)
                e(f"v_cvt_pk_bf16_f32 v{n}, v{o}, v{o+1}")
                e(f"v_cvt_pk_bf16_f32 v{n+1}, v{o+2}, v{o+3}")
        for hd in range(2):
            for tb in range(2):
                n = OP + 4 * (2 * hd + tb)
                e(f"v_permlane16_swap_b32 v{n}, v{n+2}")
                e(f"v_permlane16_swap_b32 v{n+1}, v{n+3}")
        e.hook = None
        for hd in range(2):
            for tb in range(2):
                n = OP + 4 * (2 * hd + tb)
                e.vm(f"buffer_store_dwordx4 v[{n}:{n+3}], v{VOST+tb}, {SRD_WS}, 0 offen offset:{1024*hd} sc1", "st")
        self.publish_act(0)


    def phase2(self):
        e = self.e
        cfg = self.cfg
        RD_ = cfg.ring_d
        e("L_p2:")
        e.vmq, e.lgq = [], []
        if cfg.stop == "p1":
            e("s_waitcnt vmcnt(0)")
            e("s_branch L_fin")
            return
        self.check_flag(VFLAG, VFA)
        self.stamp(7)

        def loads(i):
            r = RING + 8 * (i % RD_)
            pre = None
            if i < 18:
                so, off = sAH, (i % 4) * 1024
                pre = f"s_add_u32 {sAH}, {sAH}, 4096" if (i % 4 == 0 and i > 0) else None
            elif i < 20:
                so, off = sAB, (i - 18) * 1024
            elif i < 22:
                so, off = (sX20 if i == 20 else sX21), 0
            else:
                d = i - 22
                so, off = sAO, (d % 4) * 1024
                pre = f"s_add_u32 {sAO}, {sAO}, 4096" if d == 4 else None
            return pre, [f"buffer_load_dwordx4 v[{r}:{r+3}], v{VA0}, {SRD_WS}, {so} offen offset:{off} sc1",
                         f"buffer_load_dwordx4 v[{r+4}:{r+7}], v{VA1}, {SRD_WS}, {so} offen offset:{off} sc1"]

        def issue(i):
            pre, ld = loads(i)
            if pre:
                e(pre)
            for t in ld:
                e.vm(t, ("a", i))
        e.vmq = []
        for i in range(RD_):
            issue(i)
        e.vm(f"buffer_load_dwordx4 v[{RES}:{RES+3}], v{VRES}, {SRD_X}, 0 offen", "res")
        e.vm(f"buffer_load_dwordx4 v[{RES+4}:{RES+7}], v{VRES}, {SRD_X}, 0 offen offset:16", "res")
        e.vm(f"buffer_load_dwordx4 v[{G2}:{G2+3}], v{VRS2}, {SRD_WS}, 0 offen sc1", "g2")
        WF_CHECK, OF_CHECK = 18 - RD_, 22 - RD_
        WF_ISSUE, OF_ISSUE = max(WF_CHECK - 4, 0), WF_CHECK
        V2 = VT0
        for i in range(30):
            if i == WF_CHECK:
                e.wait_vm("wf")
                save = list(e.vmq)
                self.check_flag(V2, VFW)
                e.vmq = save
            if i == WF_ISSUE:
                e.vm(f"buffer_load_dwordx2 v[{V2}:{V2+1}], v{VFW}, {SRD_WS}, 0 offen sc1", "wf")
            if i == OF_ISSUE:
                e.vm(f"buffer_load_dwordx2 v[{VFLAG}:{VFLAG+1}], v{VFO}, {SRD_WS}, 0 offen sc1", "of")
            if i == OF_CHECK:
                e.wait_vm("of")
                save = list(e.vmq)
                self.check_flag(VFLAG, VFO)
                e.vmq = save
                self.stamp(7, "p2")
            if i == 24:
                self.epoch_loads()
            e.wait_vm(("a", i))
            r = RING + 8 * (i % RD_)
            for cs in range(2):
                for ps in range(2):
                    a = 16 * (2 * cs + ps)
                    c = "0" if i == 0 else f"v[{a}:{a+15}]"
                    e(f"v_mfma_f32_32x32x16_bf16 v[{a}:{a+15}], a[{8*i+4*cs}:{8*i+4*cs+3}], v[{r+4*ps}:{r+4*ps+3}], {c}")
            if i + RD_ < 30:
                issue(i + RD_)
        self.stamp(8)
        WA = RING
        for sl in range(1, 4):
            e(f"s_xor_b32 {sA}, {sW}, {sl}")
            e(f"s_mul_i32 {sA}, {sA}, {3*4096}")
            e(f"s_add_u32 {sA}, {sA}, {(sl-1)*4096}")
            e(f"v_add_u32 v{WA+sl}, {sA}, v{VLANE16}")
        e(f"s_mul_i32 {sA}, {sW}, {3*4096}")
        e(f"v_add_u32 v{WA}, {sA}, v{VLANE16}")
        for sl in range(1, 4):
            for q in range(4):
                a = 16 * sl + 4 * q
                e.lg(f"ds_write_b128 v{WA+sl}, v[{a}:{a+3}] offset:{1024*q}", "rw")
        RX = 80
        e.wait_vm("res")
        for i in range(8):
            e(f"v_lshlrev_b32 v{RX+2*i}, 16, v{RES+i}")
            e(f"v_and_b32 v{RX+2*i+1}, 0xffff0000, v{RES+i}")
        Lc, Lok = self.lab("g2chk"), self.lab("g2ok")
        e.wait_vm("g2")
        e(f"s_mov_b32 {sSPIN}, 0")
        e(f"{Lc}:")
        e(f"v_cmp_eq_u32 vcc, {sT}, v{G2+3}")
        e(f"s_cmp_eq_u64 vcc, exec")
        e(f"s_cbranch_scc1 {Lok}")
        e(f"s_add_u32 {sSPIN}, {sSPIN}, 1")
        e(f"s_cmp_ge_u32 {sSPIN}, {SPIN_MAX}")
        e(f"s_cbranch_scc1 {Lok}")
        e(f"buffer_load_dwordx4 v[{G2}:{G2+3}], v{VRS2}, {SRD_WS}, 0 offen sc1")
        e("s_waitcnt vmcnt(0)")
        e(f"s_branch {Lc}")
        e(f"{Lok}:")
        e.wait_lg_all()
        e("s_barrier")
        RD = 96
        for sl in range(1, 4):
            for q in range(4):
                r = RD + 16 * (sl - 1) + 4 * q
                e.lg(f"ds_read_b128 v[{r}:{r+3}], v{WA} offset:{4096*(sl-1)+1024*q}", ("rr", sl))
        for sl in range(1, 4):
            e.wait_lg(("rr", sl))
            for i in range(8):
                r = RD + 16 * (sl - 1) + 2 * i
                e(f"v_pk_add_f32 v[{2*i}:{2*i+1}], v[{2*i}:{2*i+1}], v[{r}:{r+1}]")
        for i in range(8):
            e(f"v_pk_fma_f32 v[{2*i}:{2*i+1}], v[{2*i}:{2*i+1}], v[{G2+2}:{G2+3}], v[{RX+2*i}:{RX+2*i+1}] op_sel_hi:[1,0,1]")
        for i in range(8):
            e(f"v_cvt_pk_bf16_f32 v{16+i}, v{2*i}, v{2*i+1}")
        e.vm(f"buffer_store_dwordx4 v[16:19], v{VRES}, {SRD_OUT}, 0 offen", "out")
        e.vm(f"buffer_store_dwordx4 v[20:23], v{VRES}, {SRD_OUT}, 0 offen offset:16", "out")
        self.stamp(9)
        self.epoch_update()

    EPR = 216

    def epoch_loads(self):
        e = self.e
        L = self.lab("noepl")
        R = self.EPR
        e(f"v_lshlrev_b32 v{R+8}, 3, v{VL}")
        e(f"s_or_b32 {sA}, s2, {sW}")
        e(f"v_add_u32 v{R+8}, {WS_FLAG}, v{R+8}")
        e(f"s_cmp_eq_u32 {sA}, 0")
        e(f"s_cbranch_scc0 {L}")
        for q in range(4):
            e(f"buffer_load_dwordx2 v[{R+2*q}:{R+2*q+1}], v{R+8}, {SRD_WS}, 0 offen offset:{512*q} sc1")
        e(f"{L}:")

    def epoch_update(self):
        e = self.e
        R = self.EPR
        Lskip = self.lab("noepoch")
        e(f"s_or_b32 {sA}, s2, {sW}")
        e(f"s_cmp_eq_u32 {sA}, 0")
        e(f"s_cbranch_scc0 {Lskip}")
        Lc, Lok = self.lab("echk"), self.lab("eok")
        e(f"s_mov_b32 {sSPIN}, 0")
        e("s_waitcnt vmcnt(2)")
        e(f"{Lc}:")
        e(f"s_mov_b64 {sM2}, exec")
        for q in range(4):
            e(f"v_cmp_eq_u32 vcc, {sT}, v{R+2*q}")
            e(f"v_cmp_eq_u32 {sM}, {sNT}, v{R+1+2*q}")
            e(f"s_and_b64 {sM2}, {sM2}, vcc")
            e(f"s_and_b64 {sM2}, {sM2}, {sM}")
        e(f"s_cmp_eq_u64 {sM2}, exec")
        e(f"s_cbranch_scc1 {Lok}")
        e(f"s_add_u32 {sSPIN}, {sSPIN}, 1")
        e(f"s_cmp_ge_u32 {sSPIN}, {SPIN_MAX}")
        e(f"s_cbranch_scc1 {Lok}")
        for q in range(4):
            e(f"buffer_load_dwordx2 v[{R+2*q}:{R+2*q+1}], v{R+8}, {SRD_WS}, 0 offen offset:{512*q} sc1")
        e("s_waitcnt vmcnt(0)")
        e(f"s_branch {Lc}")
        e(f"{Lok}:")
        e(f"v_mov_b32 v33, 0")
        self.oob_select(33, 33, 1)
        e(f"v_mov_b32 v34, {sT}")
        e(f"buffer_store_dword v34, v33, {SRD_WS}, 0 offen sc1")
        e(f"{Lskip}:")

    def build(self):
        e = self.e
        self.entry()
        for role in ("att", "ffn", "wide"):
            self.phase1(role)
            if self.cfg.stop != "p1gemm":
                n = len(e.vmq) - 1 - e.vmq.index("hf")
                e("s_waitcnt vmcnt(%d)" % min(n, 63))
            e("s_branch L_p2")
        self.phase2()
        e("L_fin:")
        self.dump_stamps()
        e("L_end:")
        e("s_endpgm")
        lines = fix_hazards(e.lines, verbose=True)
        hdr = f"""; LayerNorm -> (dilated sliding-window attention | ReLU FFN) -> projection + residual, one persistent launch
; @launch grid=(256,1,1) block=(256,1,1) lds=163840
.amdgcn_target "amdgcn-amd-amdhsa--gfx950"
.text
.globl {KNAME}
.p2align 8
.type {KNAME},@function
{KNAME}:
"""
        ftr = f"""
.section .rodata,"a"
.p2align 6
.amdhsa_kernel {KNAME}
  .amdhsa_next_free_vgpr 512
  .amdhsa_next_free_sgpr 102
  .amdhsa_accum_offset 256
  .amdhsa_group_segment_fixed_size 0
  .amdhsa_kernarg_size 72
  .amdhsa_user_sgpr_count 2
  .amdhsa_user_sgpr_kernarg_segment_ptr 1
  .amdhsa_system_sgpr_workgroup_id_x 1
.end_amdhsa_kernel
"""
        return hdr + "\n".join(lines) + "\n" + ftr


if __name__ == "__main__":
    cfg = Cfg()
    open(sys.argv[1] if len(sys.argv) > 1 else "k.s", "w").write(Gen(cfg).build())
```

```python
import re

REG_RE = re.compile(r"^(-?\|?)([vas])(\d+)\|?$")
RNG_RE = re.compile(r"^(-?\|?)([vas])\[(\d+):(\d+)\]\|?$")

TRANS = ("v_exp_f32", "v_log_f32", "v_rcp_f32", "v_rsq_f32", "v_sqrt_f32", "v_sin_f32", "v_cos_f32")


def regs_of(tok):
    tok = tok.strip()
    m = REG_RE.match(tok)
    if m:
        return [(m.group(2), int(m.group(3)))]
    m = RNG_RE.match(tok)
    if m:
        return [(m.group(2), i) for i in range(int(m.group(3)), int(m.group(4)) + 1)]
    if tok in ("vcc", "vcc_lo", "vcc_hi"):
        return [("s", "vcc")]
    if tok in ("exec", "exec_lo", "exec_hi"):
        return [("s", "exec")]
    if tok == "m0":
        return [("s", "m0")]
    return []


def split_ops(s):
    out, depth, cur = [], 0, ""
    for ch in s:
        if ch == "[":
            depth += 1
        if ch == "]":
            depth -= 1
        if ch == "," and depth == 0:
            out.append(cur.strip())
            cur = ""
        else:
            cur += ch
    if cur.strip():
        out.append(cur.strip())
    return out


class Ins:
    __slots__ = ("text", "op", "kind", "w", "r", "info", "label", "target", "mods")

    def __init__(self, text):
        self.text = text
        self.label = None
        self.target = None
        self.w = []
        self.r = []
        self.info = {}
        self.kind = "other"
        t = text.split(";")[0].strip()
        if t.endswith(":"):
            self.label = t[:-1]
            self.kind = "label"
            self.op = ""
            return
        if t.startswith(".") or not t:
            self.kind = "directive"
            self.op = ""
            return
        parts = t.split(None, 1)
        op = parts[0]
        self.op = op
        rest = parts[1] if len(parts) > 1 else ""
        ops = split_ops(rest)
        mods = []
        if ops:
            last = ops[-1].split()
            ops[-1] = last[0]
            mods = last[1:]
        self.mods = mods
        R = lambda i: regs_of(ops[i]) if i < len(ops) else []
        base = re.sub(r"_(e32|e64|dpp|sdwa)$", "", op)
        if op.startswith("v_mfma"):
            self.kind = "mfma"
            self.w = R(0)
            self.info["A"] = R(1)
            self.info["B"] = R(2)
            self.info["C"] = R(3)
            self.r = R(1) + R(2) + R(3)
            self.info["passes"] = 8 if "32x32" in op else 4
        elif op.startswith("v_"):
            self.kind = "valu"
            if base.startswith("v_permlane") and "swap" in base:
                self.info["perm"] = True
                self.w = R(0) + R(1)
                self.r = R(0) + R(1)
            elif base.startswith("v_cmp"):
                self.w = R(0)
                self.r = sum((R(i) for i in range(1, len(ops))), [])
            elif base in ("v_readfirstlane_b32", "v_readlane_b32"):
                self.info["readlane"] = True
                self.w = R(0)
                self.r = sum((R(i) for i in range(1, len(ops))), [])
            else:
                self.w = R(0)
                self.r = sum((R(i) for i in range(1, len(ops))), [])
                if base in ("v_fmac_f32", "v_mac_f32", "v_dot2c_f32_bf16", "v_writelane_b32", "v_fmamk_f32_x"):
                    self.r += R(0)
                if base == "v_cndmask_b32" and len(ops) == 3:
                    self.r += [("s", "vcc")]
            if base in TRANS:
                self.info["trans"] = True
            if base.startswith("v_dot2"):
                self.info["dot"] = base
                self.info["dotC"] = R(0) if base.startswith("v_dot2c") else R(3)
                self.info["dotAB"] = R(1) + R(2)
            if op.endswith("_dpp") or any(m.startswith(("row_", "quad_perm", "wave_")) for m in mods):
                self.info["dpp"] = True
                self.r += R(0) if False else []
            if op.endswith("_sdwa") or any(m.startswith("op_sel:") for m in mods):
                self.info["opsel"] = True
        elif op.startswith("ds_"):
            self.kind = "ds"
            if op.startswith("ds_read") or op.startswith("ds_bpermute") or op.startswith("ds_swizzle"):
                self.w = R(0)
                self.r = sum((R(i) for i in range(1, len(ops))), [])
            else:
                self.r = sum((R(i) for i in range(0, len(ops))), [])
        elif op.startswith("buffer_"):
            self.kind = "vmem"
            if "lds" in mods:
                self.info["ldsdma"] = True
                self.r = sum((R(i) for i in range(0, len(ops))), []) + [("s", "m0")]
            elif op.startswith("buffer_load"):
                self.w = R(0)
                self.r = sum((R(i) for i in range(1, len(ops))), [])
            else:
                self.r = sum((R(i) for i in range(0, len(ops))), [])
                if op.endswith(("x3", "x4")):
                    self.info["wide_store"] = R(0)
        elif op.startswith("global_"):
            self.kind = "vmem"
            if op.startswith("global_load_lds"):
                self.info["ldsdma"] = True
                self.r = sum((R(i) for i in range(0, len(ops))), []) + [("s", "m0")]
            elif op.startswith("global_load"):
                self.w = R(0)
                self.r = sum((R(i) for i in range(1, len(ops))), [])
            else:
                self.r = sum((R(i) for i in range(0, len(ops))), [])
                if op.endswith(("x3", "x4")):
                    self.info["wide_store"] = R(1)
        elif op.startswith("s_"):
            if op == "s_nop":
                self.kind = "nop"
                self.info["n"] = int(ops[0], 0) + 1
            elif op in ("s_branch",) or op.startswith("s_cbranch"):
                self.kind = "branch"
                self.target = ops[0]
                self.info["uncond"] = op == "s_branch"
            elif op == "s_endpgm":
                self.kind = "end"
            elif op.startswith(("s_waitcnt", "s_barrier", "s_setprio", "s_sleep")):
                self.kind = "sctl"
            elif op.startswith(("s_load", "s_memtime", "s_memrealtime")):
                self.kind = "smem"
                self.w = R(0)
                self.r = sum((R(i) for i in range(1, len(ops))), [])
            elif op.startswith("s_cmp") or op.startswith("s_bitcmp"):
                self.kind = "salu"
                self.r = sum((R(i) for i in range(0, len(ops))), [])
            else:
                self.kind = "salu"
                self.w = R(0)
                self.r = sum((R(i) for i in range(1, len(ops))), [])
                if "saveexec" in op:
                    self.w += [("s", "exec")]
        else:
            raise ValueError("unknown instruction: " + text)


MAXAGE = 22


def isvec(r):
    return r[0] in ("v", "a")


def need_states(ins, st):
    need = 0
    why = None

    def req(key, n, msg):
        nonlocal need, why
        if key in st and st[key] < n and n - st[key] > need:
            need = n - st[key]
            why = msg

    k = ins.kind
    if k == "mfma":
        P = ins.info["passes"]
        for r in ins.r:
            req(("valu_w", r), 2, "valu->mfma")
            req(("trans_w", r), 2, "trans->mfma")
            req(("dot_w", r), 3, "dot->mfma")
        for r in ins.info["A"] + ins.info["B"]:
            req(("mfma4_w", r), 8, "mfma4->AB")
            req(("mfma8_w", r), 12, "mfma8->AB")
        C = ins.info["C"]
        for r in C:
            for (ev, n) in (("mfma4_w", 6), ("mfma8_w", 10)):
                key = (ev, r)
                if key in st:
                    sig = st.get(("sig", r))
                    exact = ("sigeq", r) in st and False
                    prod = st.get(("prod", r))
                    if prod == (P, C[0], len(C)):
                        continue
                    req(key, n, "mfma->C overlap")
        for r in ins.w:
            req(("wstore", r), 1, "store data WAR (mfma)")
        for r in ins.w:
            if r in C:
                continue
            req(("mfma4_w", r), 8, "mfma->mfma WAW")
            req(("mfma8_w", r), 12, "mfma->mfma WAW")
    elif k == "valu":
        for r in ins.r + ins.w:
            if isvec(r):
                req(("mfma4_w", r), 8, "mfma4->valu")
                req(("mfma8_w", r), 12, "mfma8->valu")
        for r in ins.w:
            if isvec(r):
                req(("mfmaC4_r", r), 3, "mfmaC WAR")
                req(("mfmaC8_r", r), 7, "mfmaC WAR")
                req(("wstore", r), 2, "store data WAR")
                if not (ins.info.get("dot") and st.get(("dotop", r)) == ins.info["dot"]):
                    req(("dot_w", r), 3, "dot WAW")
        for r in ins.r:
            if isvec(r):
                if not ins.info.get("trans"):
                    req(("trans_w", r), 1, "trans->valu")
                else:
                    req(("trans_w", r), 1, "trans->trans")
                if ins.info.get("dpp") or ins.info.get("perm"):
                    req(("valu_w", r), 2, "valu->dpp/perm")
                    req(("trans_w", r), 2, "valu->dpp/perm")
                if ins.info.get("readlane"):
                    req(("valu_w", r), 1, "valu->readlane")
                    req(("trans_w", r), 1, "valu->readlane")
                req(("opsel_w", r), 1, "opsel->valu")
                if not (ins.info.get("dot") and st.get(("dotop", r)) == ins.info["dot"] and r in ins.info["dotC"] and r not in ins.info["dotAB"]):
                    req(("dot_w", r), 3, "dot->valu")
            else:
                req(("valu_sw", r), 4 if ins.info.get("readlane") else 2, "valu sgpr->valu const")
        if ins.info.get("dpp"):
            for r in ins.w:
                req(("valu_w", r), 2, "valu->dpp old")
    elif k in ("vmem", "ds"):
        for r in ins.r + ins.w:
            if isvec(r):
                req(("mfma4_w", r), 8, "mfma4->mem")
                req(("mfma8_w", r), 12, "mfma8->mem")
                if r in ins.r:
                    req(("dot_w", r), 3, "dot->mem")
                    req(("trans_w", r), 1, "trans->mem")
        for r in ins.w:
            if isvec(r):
                req(("wstore", r), 1, "store data WAR (load)")
                req(("mfmaC4_r", r), 3, "mfmaC WAR (load)")
                req(("mfmaC8_r", r), 7, "mfmaC WAR (load)")
        if k == "vmem":
            for r in ins.r:
                if not isvec(r):
                    req(("valu_sw", r), 5, "valu sgpr->vmem")
            if ins.info.get("ldsdma"):
                req(("salu_m0", ("s", "m0")), 1, "m0->ldsdma")
    elif k in ("salu", "smem", "branch"):
        for r in ins.r:
            req(("valu_sw", r), 1, "valu sgpr->salu (pad)")
        if k == "branch" and "vcc" in ins.op:
            req(("valu_sw", ("s", "vcc")), 5, "vcc->branch")
    return need, why


def step(ins, st):
    n = ins.info.get("n", 1) if ins.kind == "nop" else 1
    if ins.kind in ("label", "directive"):
        return st
    new = {}
    for key, age in st.items():
        if key[0] in ("prod", "dotop"):
            new[key] = age
        else:
            a = age + n
            if a < MAXAGE:
                new[key] = a
    st = new
    k = ins.kind

    def clear(r):
        for ev in ("valu_w", "trans_w", "mfma4_w", "mfma8_w", "dot_w", "opsel_w", "prod", "dotop"):
            st.pop((ev, r), None)

    if k == "mfma":
        P = ins.info["passes"]
        for r in ins.w:
            clear(r)
            st[("mfma%d_w" % P, r)] = 0
            st[("prod", r)] = (P, ins.w[0], len(ins.w))
        for r in ins.info["C"]:
            st[("mfmaC%d_r" % P, r)] = 0
    elif k == "valu":
        for r in ins.w:
            if isvec(r):
                clear(r)
                if ins.info.get("trans"):
                    st[("trans_w", r)] = 0
                elif ins.info.get("dot"):
                    st[("dot_w", r)] = 0
                    st[("dotop", r)] = ins.info["dot"]
                    st[("valu_w", r)] = 0
                else:
                    st[("valu_w", r)] = 0
                if ins.info.get("opsel"):
                    st[("opsel_w", r)] = 0
            else:
                st[("valu_sw", r)] = 0
    elif k in ("vmem", "ds"):
        for r in ins.w:
            clear(r)
        ws = ins.info.get("wide_store")
        if ws:
            for r in ws:
                st[("wstore", r)] = 0
        if k == "ds" and ins.op.startswith("ds_write_b128"):
            pass
    elif k in ("salu", "smem"):
        for r in ins.w:
            st.pop(("valu_sw", r), None)
            if r == ("s", "m0"):
                st[("salu_m0", r)] = 0
    for key in [x for x in st if x[0] == "prod"]:
        r = key[1]
        if ("mfma4_w", r) not in st and ("mfma8_w", r) not in st:
            del st[key]
    for key in [x for x in st if x[0] == "dotop"]:
        if ("dot_w", key[1]) not in st:
            del st[key]
    return st


def merge(a, b):
    if a is None:
        return dict(b)
    out = dict(a)
    for key, v in b.items():
        if key[0] in ("prod", "dotop"):
            if key in out and out[key] != v:
                out[key] = ("mixed",)
            elif key not in out:
                out[key] = v
        else:
            out[key] = min(out[key], v) if key in out else v
    return out


def fix_hazards(lines, verbose=False):
    total = 0
    for _ in range(200):
        ins = [Ins(l) for l in lines]
        labels = {x.label: i for i, x in enumerate(ins) if x.label}
        n = len(ins)
        state_in = [None] * (n + 1)
        state_in[0] = {}
        work = [0]
        while work:
            i = work.pop()
            st = state_in[i]
            while i < n:
                x = ins[i]
                st = step(x, dict(st))
                nxt = []
                if x.kind == "end":
                    break
                if x.kind == "branch":
                    if x.target in labels:
                        t = labels[x.target]
                        m = merge(state_in[t], st)
                        if m != state_in[t]:
                            state_in[t] = m
                            work.append(t)
                    if x.info["uncond"]:
                        break
                i += 1
                m = merge(state_in[i], st)
                if m == state_in[i]:
                    break
                state_in[i] = m
                st = m
        inserts = []
        for i, x in enumerate(ins):
            if state_in[i] is None or x.kind in ("label", "directive", "nop"):
                continue
            need, why = need_states(x, state_in[i])
            if need > 0:
                inserts.append((i, need, why))
        if not inserts:
            if verbose:
                print("hazard nops inserted:", total)
            return lines
        last = -100
        out = []
        ins_map = {}
        for (i, need, why) in inserts:
            if i - last > 24:
                ins_map[i] = (need, why)
                last = i
        for i, l in enumerate(lines):
            if i in ins_map:
                need, why = ins_map[i]
                total += 1
                while need > 0:
                    c = min(need, 16)
                    out.append(f"  s_nop {c-1}")
                    need -= c
            out.append(l)
        lines = out
    raise RuntimeError("hazard fixer did not converge")


class Em:
    def __init__(self):
        self.lines = []
        self.vmq = []
        self.lgq = []
        self.hook = None
        self.in_hook = False

    def __call__(self, s):
        for l in s.split("\n"):
            l = l.strip()
            if not l or l.startswith(";"):
                continue
            self.lines.append(l if l.endswith(":") else "  " + l)
            if self.hook and not self.in_hook:
                self.in_hook = True
                self.hook(l)
                self.in_hook = False

    def vm(self, s, tag=None):
        self(s)
        self.vmq.append(tag)

    def lg(self, s, tag=None):
        self(s)
        self.lgq.append(tag)

    def vm_need(self, tags):
        if isinstance(tags, str) or isinstance(tags, tuple):
            tags = [tags]
        last = -1
        for i, t in enumerate(self.vmq):
            if t in tags:
                last = i
        if last < 0:
            return None
        return len(self.vmq) - 1 - last

    def wait_vm(self, tags, extra=""):
        n = self.vm_need(tags)
        if n is None:
            return
        n = min(n, 63)
        self(f"s_waitcnt vmcnt({n})")
        self.vmq = self.vmq[len(self.vmq) - n:] if n else []

    def wait_vm_ring(self, tag, is_ring):
        last = max(i for i, t in enumerate(self.vmq) if t == tag)
        n = sum(1 for t in self.vmq[last + 1:] if is_ring(t))
        self(f"s_waitcnt vmcnt({min(n, 63)})")
        self.vmq = self.vmq[last + 1:]

    def wait_vm_all(self):
        self("s_waitcnt vmcnt(0)")
        self.vmq = []

    def lg_need(self, tags):
        if isinstance(tags, str) or isinstance(tags, tuple):
            tags = [tags]
        last = -1
        for i, t in enumerate(self.lgq):
            if t in tags:
                last = i
        if last < 0:
            return None
        return len(self.lgq) - 1 - last

    def wait_lg(self, tags):
        n = self.lg_need(tags)
        if n is None:
            return
        n = min(n, 15)
        self(f"s_waitcnt lgkmcnt({n})")
        self.lgq = self.lgq[len(self.lgq) - n:] if n else []

    def wait_lg_all(self):
        self("s_waitcnt lgkmcnt(0)")
        self.lgq = []

    def text(self):
        return "\n".join(self.lines) + "\n"
```

```python
import sys
from asmgen import Em, fix_hazards

KNAME = "parallel_sum__sliding_local_dilated__dense_activation_relu__prompt_kernel"

WS_E = 0x0
WS_FLAG = 0x1000
WS_B2FLAG = 0x3000
WS_ROW = 0x10000
NCOL = 2944
WS_COL = 0x20000
WS_B2T = 0x40000
B2S = 120
WS_ACT = 0x300000
NSTEP = 118
WS_DBG = 0x1000000
OOB = 0x7FFFFF00

LOG2E = 1.4426950408889634

SRD_X, SRD_W, SRD_WS, SRD_OUT, SRD_AUX = "s[4:7]", "s[8:11]", "s[12:15]", "s[16:19]", "s[20:23]"
sW = "s3"
sXCD, sIDX = "s40", "s41"
sRT, sCT, sK0, sP, sCH = "s42", "s43", "s44", "s45", "s46"
sCSO, sCSP, sCSM, sCSG = "s47", "s48", "s49", "s50"
sKX, sKW, sKW8, sWX, sWW = "s51", "s52", "s53", "s54", "s55"
sT, sNT, sSPIN, sJ2, sN2 = "s56", "s57", "s58", "s59", "s60"
sA, sB, sC, sD = "s61", "s96", "s97", "s98"
sE, sF = "s99", "s100"
sM = "s[62:63]"
sM2 = "s[30:31]"
sG2 = "s101"
SRD_CS = "s[92:95]"
sROW, sB2D = "s90", "s91"
sAH, sAO, sX20, sX21, sAB, sDB, sDO = "s24", "s25", "s26", "s27", "s28", "s29", "s32"
sAHX = ["s24", "s38", "s39", "s91", "s0"]
sAOX = ["s25", "s33"]
sSGN = "s37"
SGN = 0x80008000
sH0, HM0, HM1 = "s36", "s[30:31]", "s[34:35]"
SPIN_MAX = 1 << 18

ACC = 0
XF = 112
WF = 128
VXA = 160
VXA1 = 164
VWA = 168
VWA2 = 169
VXD = 170
VWD = 174
GROW = 182
GCOL = 190
VFLAG = 206
VLANE16 = 208
VL = 209
VE = 210
VGRA = 211
VGCA = 213
VGCA2 = 214
VB2FA = 215
BIASC = 216
BIASP = 220
MASKC = 224
ONES = 226
VOST = 230
VRVW = 232
VRVR = 233
VFA = 234
VFO = 235
VRES = 236
VRS2 = 237
VFST = 238
VA1 = 239
VA0 = 181
RES = 240
G2 = 248
VT0 = 252
FMASK = 216
VCSO = 220
PMASK = 164
PTMP = 168
LDS_RV = 122880
AUX_CS = 122880
AUX_B2 = AUX_CS + 32768
VFW = 210
TB = 182
VROWS = 190
CSA = 208
RING = 64
RING_D = 10


def hexf(x):
    import struct
    return "0x%08x" % struct.unpack("<I", struct.pack("<f", x))[0]


class Cfg:
    def __init__(self, **kw):
        self.stamps = False
        self.stop = None
        self.stampset = "main"
        self.cap = 5
        self.b2_poll = 11
        self.b2_chk_it = 3
        self.b2_steps = None
        self.pro_order = ("c0", "b2u", "E", "c1", "rows")
        self.rows_g = None
        self.rows_at = (4, 0)
        self.cs_steps = {4: 3, 5: 3, 6: 2}
        self.cs_it = 2
        self.b2_pub_it = 0
        self.of_issue = 8
        self.of_check = 14
        self.att_drip = 70
        self.gather_step = 24
        self.ring_d = 10
        self.p2map = "8x4"
        self.verbose = False
        self.x_nowait = 0
        self.__dict__.update(kw)


def split_items(lines):
    out, i = [], 0
    while i < len(lines):
        t = lines[i].strip()
        if t.startswith("s_cmp"):
            j = i + 1
            while not lines[j].strip().startswith(("s_cselect", "s_cbranch")):
                j += 1
            while j + 1 < len(lines) and lines[j + 1].strip().startswith("s_cselect"):
                j += 1
            out.append(("grp", [x.strip() for x in lines[i:j + 1]]))
            i = j + 1
        else:
            out.append(("op", t))
            i += 1
    return out


def remap_temps(lines, base=TB):
    import re

    def f(m):
        return "v%d" % (base + int(m.group(1)) - 1)
    return [re.sub(r"\bv([1-9]|1[0-5])\b", f, l) for l in lines]


class Gen:
    def __init__(self, cfg):
        self.cfg = cfg
        self.e = Em()
        self.nstamp = 0
        self.uid = 0

    def lab(self, name):
        self.uid += 1
        return f"L_{name}_{self.uid}"


    def capture(self, f, *a):
        keep = self.e
        self.e = Em()
        f(*a)
        lines = self.e.lines
        self.e = keep
        return lines

    def stamp(self, k, kind="main", wait=True):
        if not self.cfg.stamps:
            return
        if k > 0 and kind != self.cfg.stampset:
            return
        e = self.e
        assert k < 12
        e(f"s_memtime s[{64+2*k}:{65+2*k}]")
        if wait:
            e("s_waitcnt lgkmcnt(0)")
            e.lgq = []

    def clk(self, k):
        if self.cfg.stamps and self.cfg.stampset == "clk":
            self.e(f"s_memtime s[{64+2*k}:{65+2*k}]")
            self.rstamp(k + 1)

    def rstamp(self, k, wait=True):
        if not self.cfg.stamps:
            return
        e = self.e
        e(f"s_memrealtime s[{64+2*k}:{65+2*k}]")
        if wait:
            e("s_waitcnt lgkmcnt(0)")
            e.lgq = []

    def dump_stamps(self):
        if not self.cfg.stamps:
            return
        e = self.e
        self.rstamp(11)
        e(f"s_lshl_b32 {sA}, s2, 2")
        e(f"s_add_u32 {sA}, {sA}, {sW}")
        e(f"s_lshl_b32 {sA}, {sA}, 6")
        e(f"s_add_u32 {sA}, {sA}, {WS_DBG}")
        for k in range(0, 12, 4):
            for i in range(4):
                e(f"v_mov_b32 v{i}, s{64+2*(k+i)}")
            e(f"v_mov_b32 v4, {k*4}")
            e(f"buffer_store_dwordx4 v[0:3], v4, {SRD_WS}, {sA} offen")
            e("s_waitcnt vmcnt(0)")


    def entry(self):
        e = self.e
        e(f"""
        s_cmp_ge_u32 s2, 256
        s_cbranch_scc1 L_end
        """)
        self.stamp(0, wait=False)
        self.rstamp(10, wait=False)
        e(f"""
        s_load_dwordx4 s[24:27], s[0:1], 0
        s_load_dwordx2 s[38:39], s[0:1], 64
        s_load_dwordx4 s[32:35], s[0:1], 32
        s_load_dwordx2 s[28:29], s[0:1], 16
        s_load_dwordx2 s[36:37], s[0:1], 48
        v_lshrrev_b32 v1, 6, v0
        v_and_b32 v{VL}, 63, v0
        s_and_b32 {sXCD}, s2, 7
        v_readfirstlane_b32 {sW}, v1
        s_lshr_b32 {sIDX}, s2, 3
        v_lshlrev_b32 v{VLANE16}, 4, v{VL}
        s_and_b32 {sP}, {sW}, 1
        s_lshr_b32 {sCH}, {sW}, 1
        """)
        if self.cfg.p2map == "orig":
            e(f"""
            s_lshr_b32 {sA}, {sIDX}, 3
            s_lshl_b32 {sJ2}, {sXCD}, 2
            s_add_u32 {sJ2}, {sJ2}, {sA}
            s_and_b32 {sN2}, {sIDX}, 7
            """)
        elif self.cfg.p2map == "4x8":
            e(f"""
            s_and_b32 {sA}, {sXCD}, 1
            s_lshl_b32 {sJ2}, {sA}, 4
            s_lshr_b32 {sA}, {sXCD}, 1
            s_lshl_b32 {sA}, {sA}, 2
            s_add_u32 {sJ2}, {sJ2}, {sA}
            s_lshr_b32 {sA}, {sIDX}, 3
            s_add_u32 {sJ2}, {sJ2}, {sA}
            s_and_b32 {sN2}, {sIDX}, 7
            """)
        else:
            e(f"""
            s_and_b32 {sA}, {sXCD}, 1
            s_lshl_b32 {sJ2}, {sA}, 4
            s_bfe_u32 {sA}, {sXCD}, 0x10001
            s_lshl_b32 {sA}, {sA}, 3
            s_add_u32 {sJ2}, {sJ2}, {sA}
            s_lshr_b32 {sA}, {sIDX}, 2
            s_add_u32 {sJ2}, {sJ2}, {sA}
            s_lshr_b32 {sA}, {sXCD}, 2
            s_lshl_b32 {sA}, {sA}, 2
            s_and_b32 {sN2}, {sIDX}, 3
            s_add_u32 {sN2}, {sN2}, {sA}
            """)
        e(f"""
        s_and_b32 {sA}, {sXCD}, 1
        s_lshr_b32 {sB}, {sXCD}, 1
        s_cmp_lt_u32 {sIDX}, 18
        s_cbranch_scc0 L_ffn_decode
        s_cmp_ge_u32 {sIDX}, 9
        s_cselect_b32 {sC}, 9, 0
        s_cselect_b32 {sD}, 1, 0
        s_sub_u32 {sRT}, {sIDX}, {sC}
        s_mul_i32 {sA}, {sA}, 9
        s_add_u32 {sRT}, {sRT}, {sA}
        s_lshl_b32 {sCT}, {sB}, 1
        s_add_u32 {sCT}, {sCT}, {sD}
        s_mul_i32 {sK0}, {sRT}, 57
        s_mul_i32 {sG2}, {sXCD}, 18
        s_add_u32 {sG2}, {sG2}, {sIDX}
        s_branch L_att
        L_ffn_decode:
        s_sub_u32 {sC}, {sIDX}, 18
        s_mul_i32 {sB}, {sB}, 14
        s_add_u32 {sC}, {sC}, {sB}
        s_lshr_b32 {sCT}, {sC}, 3
        s_and_b32 {sC}, {sC}, 7
        s_lshl_b32 {sA}, {sA}, 3
        s_add_u32 {sRT}, {sA}, {sC}
        s_lshl_b32 {sK0}, {sRT}, 6
        s_mul_i32 {sG2}, {sRT}, 6
        s_add_u32 {sG2}, {sG2}, {sCT}
        s_add_u32 {sG2}, {sG2}, 144
        s_cmp_eq_u32 {sCT}, 6
        s_cbranch_scc1 L_wide
        s_branch L_ffn
        """)

    def srds(self, role):
        e = self.e
        wlo, whi, wn = ("s26", "s27", 512 * 3072) if role == "att" else ("s32", "s33", 512 * 2752)
        e("s_waitcnt lgkmcnt(0)")
        e(f"""
        s_mov_b32 s4, s24
        s_and_b32 s5, s25, 0xffff
        s_mov_b32 s6, {2048*1024}
        s_mov_b32 s7, 0x00020000
        s_mov_b32 s8, {wlo}
        s_and_b32 s9, {whi}, 0xffff
        s_mov_b32 s10, {wn}
        s_mov_b32 s11, 0x00020000
        s_mov_b32 s12, s38
        s_and_b32 s13, s39, 0xffff
        s_mov_b32 s14, 0x10000000
        s_mov_b32 s15, 0x00020000
        s_mov_b32 s16, s36
        s_and_b32 s17, s37, 0xffff
        s_mov_b32 s18, {2048*1024}
        s_mov_b32 s19, 0x00020000
        """)


    def p1_params(self, role):
        if role == "wide":
            return dict(RS=448, RB=2752, NW=7, STG=45056, NB=4)
        return dict(RS=384, RB=3072 if role == "att" else 2752, NW=6, STG=40960, NB=3)


    def p1_addr_dma(self, role):
        e = self.e
        P = self.p1_params(role)
        RS, RB = P["RS"], P["RB"]
        L = f"v{VL}"
        e(f"""
        s_lshl_b32 {sA}, {sK0}, 1
        s_add_u32 {sA}, {sA}, {sCH}
        s_lshl_b32 {sB}, {sP}, 6
        s_add_u32 {sA}, {sA}, {sB}
        s_lshl_b32 {sA}, {sA}, 10
        v_lshrrev_b32 v1, 3, {L}
        v_lshrrev_b32 v2, 4, {L}
        v_and_b32 v3, 7, {L}
        v_xor_b32 v3, v3, v2
        v_lshlrev_b32 v1, 11, v1
        v_add_u32 v1, {sA}, v1
        v_lshl_add_u32 v{VXD}, v3, 4, v1
        v_xor_b32 v3, 4, v3
        v_lshl_add_u32 v{VXD+1}, v3, 4, v1
        v_add_u32 v{VXD+1}, 0x4000, v{VXD+1}
        v_add_u32 v{VXD+2}, 0x8000, v{VXD}
        v_add_u32 v{VXD+3}, 0x8000, v{VXD+1}
        s_lshl_b32 {sWX}, {sW}, 12
        s_mul_i32 {sWW}, {sW}, {1024*P['NW']}
        s_add_u32 {sWW}, {sWW}, 0x4000
        """)
        if role == "wide":
            e(f"s_mul_i32 {sB}, {sW}, {16*RB}")
            e(f"s_add_u32 {sB}, {sB}, {2*1152}")
            for j in range(7):
                e(f"""
                v_add_u32 v1, {64*j}, {L}
                v_mul_u32_u24 v2, 293, v1
                v_lshrrev_b32 v2, 13, v2
                v_mul_u32_u24 v3, 28, v2
                v_sub_u32 v1, v1, v3
                v_mul_u32_u24 v2, {RB}, v2
                v_lshl_add_u32 v1, v1, 4, v2
                v_add_u32 v{VWD+j}, {sB}, v1
                """)
        else:
            e(f"s_mul_i32 {sB}, {sW}, {16*RB}")
            e(f"s_mul_i32 {sC}, {sCT}, {128 if role == 'att' else 384}")
            e(f"s_add_u32 {sB}, {sB}, {sC}")
            for j in range(3):
                e(f"""
                v_add_u32 v1, {64*j}, {L}
                v_mul_u32_u24 v2, 171, v1
                v_lshrrev_b32 v2, 12, v2
                v_mul_u32_u24 v3, 24, v2
                v_sub_u32 v1, v1, v3
                v_lshrrev_b32 v3, 2, v1
                v_bfe_u32 v4, v2, 1, 1
                v_xor_b32 v3, v3, v4
                v_and_b32 v1, 3, v1
                v_mul_u32_u24 v2, {RB}, v2
                v_lshl_add_u32 v1, v1, 4, v2
                """)
                if role == "att":
                    e(f"""
                    v_lshrrev_b32 v4, 1, v3
                    v_and_b32 v3, 1, v3
                    v_lshl_add_u32 v1, v4, 10, v1
                    """)
                e(f"""
                v_lshl_add_u32 v1, v3, 6, v1
                v_add_u32 v{VWD+j}, {sB}, v1
                """)

    def p1_addr_lds(self, role):
        e = self.e
        P = self.p1_params(role)
        RS = P["RS"]
        L = f"v{VL}"
        e(f"""
        v_and_b32 v1, 31, {L}
        s_lshl_b32 {sA}, {sP}, 6
        v_add_u32 v1, {sA}, v1
        v_lshlrev_b32 v1, 7, v1
        v_bfe_u32 v2, {L}, 1, 3
        v_lshrrev_b32 v3, 5, {L}
        v_xor_b32 v2, v2, v3
        """)
        if role == "wide":
            e(f"s_lshl_b32 {sA}, {sCH}, 12")
            e(f"v_add_u32 v5, {sA}, v1")
            e(f"s_xor_b32 {sA}, {sA}, 0x1000")
            e(f"v_add_u32 v6, {sA}, v1")
        for s in range(4):
            e(f"v_xor_b32 v4, {2*s}, v2")
            if role == "wide":
                e(f"v_lshl_add_u32 v{VXA+s}, v4, 4, v5")
                e(f"v_lshl_add_u32 v{VXA1+s}, v4, 4, v6")
            else:
                e(f"v_lshl_add_u32 v{VXA+s}, v4, 4, v1")
        e(f"""
        v_bfe_u32 v1, {L}, 2, 2
        v_lshrrev_b32 v2, 5, {L}
        v_lshl_add_u32 v1, v2, 3, v1
        v_mul_u32_u24 v1, {RS}, v1
        v_bfe_u32 v2, {L}, 4, 1
        v_lshl_add_u32 v1, v2, 5, v1
        v_and_b32 v2, 3, {L}
        v_lshl_add_u32 v1, v2, 3, v1
        v_add_u32 v1, 0x4000, v1
        """)
        if role == "wide":
            e(f"""
            s_lshl_b32 {sA}, {sCH}, 6
            v_add_u32 v{VWA}, {sA}, v1
            v_add_u32 v{VWA2}, {6*64}, v1
            """)
        else:
            e(f"""
            v_bfe_u32 v2, {L}, 3, 1
            v_xor_b32 v2, {sCH}, v2
            v_lshl_add_u32 v{VWA}, v2, 6, v1
            """)

    def dma_list(self, role, kc):
        P = self.p1_params(role)
        base = (kc % 3) * P["STG"]
        out = []
        for j in range(4):
            out.append((f"s_add_u32 m0, {sWX}, {base + 1024*j}",
                        (f"buffer_load_dwordx4 v{VXD+j}, {SRD_X}, {sKX} offen lds", ("c", kc))))
        for j in range(P["NW"]):
            if role == "wide":
                va, so = VWD + j, sKW
            else:
                va, so = VWD + (j % 3), (sKW if j < 3 else sKW8)
            out.append((f"s_add_u32 m0, {sWW}, {base + 1024*j}",
                        (f"buffer_load_dwordx4 v{va}, {SRD_W}, {so} offen lds", ("c", kc))))
        return out

    def koff(self, role, kc):
        P = self.p1_params(role)
        out = [f"s_mov_b32 {sKX}, {kc*128}", f"s_mov_b32 {sKW}, {kc*64*P['RB']}"]
        if role != "wide":
            out.append(f"s_mov_b32 {sKW8}, {(kc*64+8)*P['RB']}")
        return out

    def issue_now(self, items):
        e = self.e
        for (a, (t, tag)) in items:
            if a:
                e(a)
                e("s_nop 0")
            e.vm(t, tag)

    def xf(self, buf, tb):
        r = XF + buf * 8 + tb * 4
        return f"v[{r}:{r+3}]"


    def wf(self, buf, blk):
        r = WF + buf * 16 + blk * 4
        return r


    def reads(self, role, s, buf):
        P = self.p1_params(role)
        RS = P["RS"]
        out = []
        if role == "wide":
            x0 = f"ds_read_b128 {self.xf(buf,0)}, v{VXA+s}"
            x1 = f"ds_read_b128 {self.xf(buf,1)}, v{VXA1+s}"
        else:
            x0 = f"ds_read_b128 {self.xf(buf,0)}, v{VXA+s}"
            x1 = f"ds_read_b128 {self.xf(buf,1)}, v{VXA+s} offset:4096"
        out.append((x0, ("x", buf, 0)))

        def wr(blk, addr, col):
            r = self.wf(buf, blk)
            for ii in range(2):
                off = (16 * s + 4 * ii) * RS + col
                out.append((f"ds_read_b64_tr_b16 v[{r+2*ii}:{r+2*ii+1}], v{addr} offset:{off}", ("w", buf, blk)))
        for blk in range(3):
            wr(blk, VWA, blk * 128)
        if role == "wide":
            wr(3, VWA2, 0)
        out.append((x1, ("x", buf, 1)))
        return out


    def acc(self, tb, blk):
        if blk == 3:
            r = 96
        else:
            r = blk * 32 + tb * 16
        return r


    def mfmas(self, role, buf, first=False):
        out = []
        order = [(0, 0), (0, 1), (0, 2)]
        if role == "wide":
            order.append((0, 3))
        order += [(1, 0), (1, 1), (1, 2)]
        for (tb, blk) in order:
            a = self.acc(tb, blk)
            w = self.wf(buf, blk)
            W = f"v[{w}:{w+3}]"
            X = self.xf(buf, tb)
            C = "0" if first else f"v[{a}:{a+15}]"
            if role == "att" and blk == 2:
                t = f"v_mfma_f32_32x32x16_bf16 v[{a}:{a+15}], {X}, {W}, {C}"
            else:
                t = f"v_mfma_f32_32x32x16_bf16 v[{a}:{a+15}], {W}, {X}, {C}"
            out.append((t, [("x", buf, tb), ("w", buf, blk)]))
        return out

    def bg_emit(self, item):
        e = self.e
        k = item[0]
        if k == "op":
            e(item[1])
        elif k == "grp":
            for t in item[1]:
                e(t)
        elif k == "vm":
            e.vm(item[1], item[2])
        elif k == "lg":
            e.lg(item[1], item[2])
        elif k == "wvm":
            e.wait_vm(item[1])
        elif k == "wlg":
            e.wait_lg(item[1])
        elif k == "call":
            item[1]()
        else:
            raise ValueError(k)

    def bg_fill(self, g, k, room, vm_ok):
        q = self.bg
        self.cur_gk = (g, k)
        while q:
            it = q[0]
            if it[0] == "at":
                if (g, k) < it[1]:
                    return
                q.pop(0)
                continue
            cost = len(it[1]) if it[0] == "grp" else (it[2] if it[0] == "call" else 1)
            if it[0] in ("wvm", "wlg"):
                cost = 0 if self._noop_wait(it) else 1
            if it[0] == "vm":
                if not vm_ok:
                    return
                vm_ok = False
            if cost > room and room < self.cfg.cap - 1:
                return
            if room <= 0 and cost > 0:
                return
            q.pop(0)
            self.bg_emit(it)
            room -= cost

    def _noop_wait(self, it):
        e = self.e
        return (e.vm_need(it[1]) if it[0] == "wvm" else e.lg_need(it[1])) is None

    def bg_flush(self):
        while self.bg:
            it = self.bg.pop(0)
            if it[0] != "at":
                self.bg_emit(it)

    def emit_step(self, role, g, buf, rd, vms, ops, first=False):
        e = self.e
        n = 7 if role == "wide" else 6
        nv = len(vms)
        table = {0: [], 1: [3], 2: [1, 4], 3: [1, 3, 5], 4: [1, 2, 4, 5], 5: [1, 2, 3, 4, 5]}
        if n == 7:
            table = {0: [], 1: [3], 2: [2, 5], 3: [1, 3, 5], 4: [1, 3, 4, 6], 5: [1, 2, 4, 5, 6], 6: [1, 2, 3, 4, 5, 6]}
        slots = dict(zip(table[nv], vms))
        rds = [[] for _ in range(n)]
        for i, x in enumerate(rd):
            rds[min(i // 2, n - 1)].append(x)
        ops = list(ops)
        for k, (t, need) in enumerate(self.mfmas(role, buf, first)):
            e.wait_lg(need)
            e(t)
            room = self.cfg.cap
            if k in slots:
                e.vm(*slots[k][1])
                room -= 1
            for (t2, tag) in rds[k]:
                e.lg(t2, tag)
                room -= 1
            pre = slots[k + 1][0] if (k + 1) in slots else None
            if pre:
                pre = [pre] if isinstance(pre, str) else list(pre)
                room -= len(pre)
            while ops and (room > 0 or k == n - 1):
                e(ops.pop(0))
                room -= 1
            self.bg_fill(g, k, room, k not in slots)
            for x in pre or []:
                e(x)

    def adv_addr(self, role, which, delta):
        out = []
        d = "0x%x" % (delta & 0xFFFFFFFF)
        for s in which.get("x", []):
            out.append(f"v_add_u32 v{VXA+s}, {d}, v{VXA+s}")
            if role == "wide":
                out.append(f"v_add_u32 v{VXA1+s}, {d}, v{VXA1+s}")
        if which.get("w"):
            out.append(f"v_add_u32 v{VWA}, {d}, v{VWA}")
            if role == "wide":
                out.append(f"v_add_u32 v{VWA2}, {d}, v{VWA2}")
        return out

    def iteration(self, role, it, vsched, hooks):
        e = self.e
        STG = self.p1_params(role)["STG"]
        last = it == 7
        delta = (((it + 1) % 3) - (it % 3)) * STG
        dl = self.dma_list(role, it + 2) if it + 2 <= 7 else []
        rest = dl[3:]
        per = [rest[0:2], rest[2:4], rest[4:]]
        for s in range(3):
            g = 4 * it + s
            rd = self.reads(role, s + 1, (s + 1) & 1)
            ops = []
            if not last:
                if s == 0:
                    pass
                if s == 1:
                    ops = self.adv_addr(role, {"x": [0, 1]}, delta)
                if s == 2:
                    ops = self.adv_addr(role, {"x": [2]}, delta)
            self.emit_step(role, g, s & 1, rd, per[s] + vsched.get(g, []), ops, first=(it == 0 and s == 0))
            if not last and s == 2:
                for t in self.adv_addr(role, {"x": [3], "w": True}, delta):
                    e(t)
        g = 4 * it + 3
        if not last:
            e.wait_vm([("c", it + 1)] + hooks.get(("wait", it), []))
            e.wait_lg_all()
            e("s_barrier")
            if ("post", it) in hooks:
                hooks[("post", it)]()
        dm = []
        ops = []
        if it + 3 <= 7:
            for t in self.koff(role, it + 3):
                e(t)
            dm = self.dma_list(role, it + 3)[:3]
        rd = [] if last else self.reads(role, 0, 0)
        self.emit_step(role, g, 1, rd, dm + vsched.get(g, []), ops)

    def get_tag(self):
        e = self.e
        e(f"v_readfirstlane_b32 {sT}, v{VE}")
        e(f"s_mul_i32 {sT}, {sT}, 0x9E3779B1")
        e(f"s_add_u32 {sT}, {sT}, 0x7F4A7C15")
        e(f"s_not_b32 {sNT}, {sT}")


    def load_epoch(self):
        e = self.e
        e(f"v_mov_b32 v{VE}, 0")
        e.vm(f"buffer_load_dword v{VE}, v{VE}, {SRD_WS}, 0 offen sc1", "E")

    def gather_addr(self, role):
        e = self.e
        L = f"v{VL}"
        e(f"v_min_u32 v2, 29, {L}")
        e(f"s_mul_i32 {sA}, {sN2}, 30")
        e(f"v_add_u32 v2, {sA}, v2")
        e(f"v_lshlrev_b32 v2, 3, v2")
        e(f"v_add_u32 v{VB2FA}, {WS_B2FLAG}, v2")
        e(f"v_and_b32 v1, 31, {L}")
        e(f"s_lshl_b32 {sA}, {sP}, 10")
        for tb in range(2):
            if role == "wide":
                e(f"s_xor_b32 {sB}, {sCH}, {tb}")
                e(f"s_lshl_b32 {sB}, {sB}, 5")
                e(f"s_add_u32 {sB}, {sB}, {sK0}")
            else:
                e(f"s_add_u32 {sB}, {sK0}, {32*tb}")
            e(f"v_add_u32 v2, {sB}, v1")
            e(f"v_min_u32 v2, 0x3ff, v2")
            e(f"v_add_u32 v2, {sA}, v2")
            e(f"v_lshlrev_b32 v2, 4, v2")
            e(f"v_add_u32 v{VGRA+tb}, {WS_ROW}, v2")
        e(f"v_lshrrev_b32 v2, 5, {L}")
        e(f"v_mul_u32_u24 v2, {NCOL}, v2")
        e(f"v_add_u32 v2, v2, v1")
        if role == "att":
            e(f"s_lshl_b32 {sA}, {sCT}, 6")
            e(f"s_lshl_b32 {sB}, {sCH}, 5")
            e(f"s_add_u32 {sA}, {sA}, {sB}")
        else:
            e(f"s_mul_i32 {sA}, {sCT}, 192")
            e(f"s_lshl_b32 {sB}, {sCH}, 5")
            e(f"s_add_u32 {sA}, {sA}, {sB}")
            e(f"s_add_u32 {sA}, {sA}, 1536")
        e(f"v_add_u32 v3, {sA}, v2")
        e(f"v_lshlrev_b32 v3, 4, v3")
        e(f"v_add_u32 v{VGCA}, {WS_COL}, v3")
        if role == "wide":
            e(f"v_add_u32 v3, {1536+1344}, v2")
            e(f"v_lshlrev_b32 v3, 4, v3")
            e(f"v_add_u32 v{VGCA2}, {WS_COL}, v3")

    def gather_loads(self, role):
        out = []
        for tb in range(2):
            out.append(f"buffer_load_dwordx4 v[{GROW+4*tb}:{GROW+4*tb+3}], v{VGRA+tb}, {SRD_WS}, 0 offen sc1")
        colstep = 512 * 16 if role == "att" else 64 * 16
        for blk in range(3):
            so = blk * colstep
            if so < 4096:
                out.append(f"buffer_load_dwordx4 v[{GCOL+4*blk}:{GCOL+4*blk+3}], v{VGCA}, {SRD_WS}, 0 offen offset:{so} sc1")
            else:
                out.append(("so", so, f"buffer_load_dwordx4 v[{GCOL+4*blk}:{GCOL+4*blk+3}], v{VGCA}, {SRD_WS}, {{so}} offen sc1"))
        if role == "wide":
            out.append(f"buffer_load_dwordx4 v[{GCOL+12}:{GCOL+15}], v{VGCA2}, {SRD_WS}, 0 offen sc1")
        return out


    def emit_gathers(self, role, tag):
        e = self.e
        for g in self.gather_loads(role):
            if isinstance(g, tuple):
                e(f"s_mov_b32 {sE}, {g[1]}")
                e.vm(g[2].format(so=sE), tag)
            else:
                e.vm(g, tag)


    def gather_items(self, role):
        out = []
        for g in self.gather_loads(role):
            if isinstance(g, tuple):
                out.append((f"s_mov_b32 {sE}, {g[1]}", (g[2].format(so=sE), "g")))
            else:
                out.append((None, (g, "g")))
        return out

    def check_gathers(self, role):
        e = self.e
        nb = 4 if role == "wide" else 3
        Lc, Lok = self.lab("gchk"), self.lab("gok")
        e(f"s_mov_b32 {sSPIN}, 0")
        e(f"{Lc}:")
        e(f"v_cmp_eq_u32 vcc, {sT}, v{GROW+3}")
        e(f"v_cmp_eq_u32 {sM}, {sT}, v{GROW+7}")
        e(f"s_and_b64 vcc, vcc, {sM}")
        for blk in range(nb):
            e(f"v_cmp_eq_u32 {sM}, {sT}, v{GCOL+4*blk+3}")
            e(f"s_and_b64 vcc, vcc, {sM}")
        e(f"s_cmp_eq_u64 vcc, exec")
        e(f"s_cbranch_scc1 {Lok}")
        e(f"s_add_u32 {sSPIN}, {sSPIN}, 1")
        e(f"s_cmp_ge_u32 {sSPIN}, {SPIN_MAX}")
        e(f"s_cbranch_scc1 {Lok}")
        save = list(e.vmq)
        self.emit_gathers(role, "g2")
        e("s_waitcnt vmcnt(0)")
        e.vmq = save
        e(f"s_branch {Lc}")
        e(f"{Lok}:")


    def check_flag(self, vreg, vaddr):
        e = self.e
        Lc, Lok = self.lab("fchk"), self.lab("fok")
        e(f"s_mov_b32 {sSPIN}, 0")
        e(f"{Lc}:")
        e(f"v_cmp_eq_u32 {HM0}, {sT}, v{vreg}")
        e(f"v_cmp_eq_u32 {HM1}, {sNT}, v{vreg+1}")
        e(f"s_and_b64 {HM0}, {HM0}, {HM1}")
        e(f"s_cmp_eq_u64 {HM0}, exec")
        e(f"s_cbranch_scc1 {Lok}")
        e(f"s_add_u32 {sSPIN}, {sSPIN}, 1")
        e(f"s_cmp_ge_u32 {sSPIN}, {SPIN_MAX}")
        e(f"s_cbranch_scc1 {Lok}")
        e(f"buffer_load_dwordx2 v[{vreg}:{vreg+1}], v{vaddr}, {SRD_WS}, 0 offen sc1")
        e("s_waitcnt vmcnt(0)")
        e(f"s_branch {Lc}")
        e(f"{Lok}:")

    def b2_setup(self):
        e = self.e
        e(f"s_lshl_b32 {sA}, {sN2}, 1")
        e(f"s_add_u32 {sA}, {sA}, {sCH}")
        e(f"s_mul_i32 {sC}, {sA}, {B2S*1024}")
        e(f"s_xor_b32 {sA}, {sA}, 1")
        e(f"s_mul_i32 {sD}, {sA}, {B2S*1024}")
        e(f"s_mul_i32 {sB}, {sW}, {18*1024}")
        e(f"s_add_u32 {sB}, {sB}, {32*1024 + WS_B2T}")
        e(f"s_add_u32 s88, {sC}, {sB}")
        e(f"s_add_u32 s89, {sD}, {sB}")
        e(f"s_mul_i32 {sDB}, {sW}, {-14*1024}")
        e(f"s_add_u32 {sDB}, {sDB}, {56*1024}")
        e(f"s_lshl_b32 {sDO}, {sW}, 12")
        e(f"s_sub_u32 {sDO}, {sDO}, {104*1024}")

    def b2_loads(self):
        out = []
        for i in range(30):
            for cbb in range(2):
                base = f"s{88+cbb}"
                pre = None
                if i < 18:
                    d = i
                    if d % 4 == 0 and d > 0:
                        pre = f"s_add_u32 {base}, {base}, 4096"
                elif i < 22:
                    d = i - 18
                    if d == 0:
                        pre = f"s_add_u32 {base}, {base}, {sDB}"
                else:
                    d = i - 22
                    if d == 0:
                        pre = f"s_add_u32 {base}, {base}, {sDO}"
                    elif d == 4:
                        pre = f"s_add_u32 {base}, {base}, 4096"
                r = 8 * i + 4 * cbb
                out.append((pre, (f"buffer_load_dwordx4 a[{r}:{r+3}], v{VLANE16}, {SRD_WS}, {base} offen offset:{(d%4)*1024} sc1", ("b2", i))))
        return out

    def oob_select(self, dst, addr, n, tmp=VT0, mask="vcc"):
        e = self.e
        e(f"v_mov_b32 v{tmp}, {OOB}")
        e(f"v_cmp_gt_u32 {mask}, {n}, v{VL}")
        e(f"v_cndmask_b32 v{dst}, v{tmp}, v{addr}, {mask}")

    def aux_addr(self, role):
        e = self.e
        L = f"v{VL}"
        e(f"""
        s_and_b32 {sA}, {sXCD}, 1
        s_lshl_b32 {sA}, {sA}, 9
        s_lshr_b32 {sB}, {sXCD}, 1
        s_lshl_b32 {sB}, {sB}, 7
        s_add_u32 {sA}, {sA}, {sB}
        s_lshl_b32 {sB}, {sIDX}, 2
        s_add_u32 {sA}, {sA}, {sB}
        s_add_u32 {sA}, {sA}, {sW}
        s_lshl_b32 {sROW}, {sA}, 11
        """)
        if role == "wide":
            return
        e(f"""
        s_mul_i32 {sA}, {sG2}, 2185
        s_lshr_b32 {sA}, {sA}, 16
        s_mul_i32 {sB}, {sA}, 30
        s_sub_u32 {sB}, {sG2}, {sB}
        s_lshl_b32 {sB}, {sB}, 2
        s_add_u32 {sB}, {sB}, {sW}
        s_mul_i32 {sC}, {sA}, {2*B2S}
        s_add_u32 {sC}, {sC}, {sB}
        s_lshl_b32 {sC}, {sC}, 10
        s_add_u32 {sB2D}, {sC}, {WS_B2T}
        s_lshl_b32 {sA}, {sA}, 7
        v_and_b32 v1, 7, {L}
        v_lshlrev_b32 v1, 4, v1
        v_add_u32 v1, {sA}, v1
        v_lshrrev_b32 v2, 3, {L}
        v_lshl_add_u32 v16, v2, 10, v1
        v_and_b32 v3, 3, v2
        v_lshrrev_b32 v2, 2, v2
        v_lshl_add_u32 v3, v2, 3, v3
        v_lshl_add_u32 v17, v3, 10, v1
        s_mov_b32 {sE}, {sB}
        """)
        if role != "ffn":
            return
        Lq, Lf, Ld = self.lab("csq"), self.lab("csf"), self.lab("csd")
        e(f"""
        s_lshr_b32 {sA}, {sXCD}, 1
        s_sub_u32 {sB}, {sIDX}, 18
        s_cmp_lt_u32 {sB}, 6
        s_cbranch_scc1 {Lq}
        s_cmp_lt_u32 {sB}, 12
        s_cbranch_scc1 {Lf}
        s_min_u32 {sA}, {sA}, 1
        s_lshl_b32 {sA}, {sA}, 1
        s_add_u32 {sA}, {sA}, {sB}
        s_add_u32 {sA}, {sA}, 30
        s_branch {Ld}
        {Lf}:
        s_mul_i32 {sA}, {sA}, 6
        s_add_u32 {sA}, {sA}, {sB}
        s_add_u32 {sA}, {sA}, 18
        s_branch {Ld}
        {Lq}:
        s_lshl_b32 {sA}, {sA}, 1
        s_and_b32 {sC}, {sB}, 1
        s_add_u32 {sA}, {sA}, {sC}
        s_lshr_b32 {sC}, {sB}, 1
        s_lshl_b32 {sC}, {sC}, 3
        s_add_u32 {sA}, {sA}, {sC}
        {Ld}:
        s_and_b32 {sB}, {sXCD}, 1
        s_lshl_b32 {sCSG}, {sA}, 6
        s_mul_i32 {sC}, {sB}, {NCOL}
        s_add_u32 {sCSG}, {sCSG}, {sC}
        s_lshl_b32 {sC}, {sW}, 4
        s_add_u32 {sCSG}, {sCSG}, {sC}
        s_lshl_b32 {sCSG}, {sCSG}, 4
        s_add_u32 {sCSG}, {sCSG}, {WS_COL}
        s_lshl_b32 {sB}, {sB}, 8
        s_lshl_b32 {sC}, {sW}, 6
        s_add_u32 {sB}, {sB}, {sC}
        v_lshrrev_b32 v1, 3, {L}
        v_add_u32 v1, {sB}, v1
        v_bfe_u32 v2, {L}, 4, 2
        v_lshlrev_b32 v2, 1, v2
        v_and_b32 v3, 7, {L}
        v_xor_b32 v2, v2, v3
        v_lshlrev_b32 v2, 4, v2
        s_lshl_b32 {sCSM}, {sW}, 13
        s_add_u32 {sCSM}, {sCSM}, {AUX_CS}
        s_cmp_ge_u32 {sA}, 24
        s_mov_b32 {sC}, 3072
        s_cselect_b32 {sCSP}, 2752, {sC}
        s_cselect_b32 {sB}, 24, 0
        s_sub_u32 {sB}, {sA}, {sB}
        s_lshl_b32 {sB}, {sB}, 7
        v_mul_u32_u24 v1, {sCSP}, v1
        v_add3_u32 v{VCSO}, v1, v2, {sB}
        s_lshl_b32 {sCSP}, {sCSP}, 3
        s_mov_b32 {sD}, {sA}
        """)

    def aux_srds(self, role):
        e = self.e
        if role == "wide":
            return
        L1, L2 = self.lab("b2o"), self.lab("b2s")
        e(f"""
        s_mov_b32 s23, 0x00020000
        s_cmp_lt_u32 {sE}, 32
        s_cbranch_scc1 {L1}
        s_mov_b32 s20, s34
        s_and_b32 s21, s35, 0xffff
        s_mov_b32 s22, {1376*1024}
        s_sub_u32 {sE}, {sE}, 32
        s_lshl_b32 {sE}, {sE}, 14
        s_add_u32 {sF}, {sE}, 4096
        v_mov_b32 v16, v17
        s_mov_b32 {sSGN}, {hex(SGN)}
        s_branch {L2}
        {L1}:
        s_mov_b32 s20, s28
        s_and_b32 s21, s29, 0xffff
        s_mov_b32 s22, {512*1024}
        s_lshl_b32 {sE}, {sE}, 14
        s_add_u32 {sF}, {sE}, 8192
        s_mov_b32 {sSGN}, 0
        {L2}:
        """)
        if role == "ffn":
            L1, L2 = self.lab("csw"), self.lab("css")
            e(f"""
            s_mov_b32 s95, 0x00020000
            s_cmp_ge_u32 {sD}, 24
            s_cbranch_scc1 {L1}
            s_mov_b32 s92, s26
            s_and_b32 s93, s27, 0xffff
            s_mov_b32 s94, {512*3072}
            s_branch {L2}
            {L1}:
            s_mov_b32 s92, s32
            s_and_b32 s93, s33, 0xffff
            s_mov_b32 s94, {512*2752}
            {L2}:
            s_mov_b32 {sCSO}, 0
            """)

    def b2u_dmas(self):
        e = self.e
        e(f"s_lshl_b32 {sA}, {sW}, 11")
        e(f"s_add_u32 {sA}, {sA}, {AUX_B2}")
        e(f"s_mov_b32 m0, {sA}")
        e("s_nop 0")
        e.vm(f"buffer_load_dwordx4 v16, {SRD_AUX}, {sE} offen lds", "b2u")
        e(f"s_add_u32 m0, {sA}, 1024")
        e("s_nop 0")
        e.vm(f"buffer_load_dwordx4 v16, {SRD_AUX}, {sF} offen lds", "b2u")

    def b2u_reads(self):
        e = self.e
        L = f"v{VL}"
        e(f"""
        v_lshrrev_b32 v1, 5, {L}
        v_bfe_u32 v2, {L}, 2, 2
        v_lshl_add_u32 v1, v1, 3, v2
        v_lshlrev_b32 v1, 7, v1
        v_and_b32 v2, 1, {L}
        v_lshl_add_u32 v1, v2, 5, v1
        v_bfe_u32 v2, {L}, 4, 1
        v_lshl_add_u32 v1, v2, 4, v1
        v_bfe_u32 v2, {L}, 1, 1
        v_lshl_add_u32 v1, v2, 3, v1
        s_lshl_b32 {sA}, {sW}, 11
        s_add_u32 {sA}, {sA}, {AUX_B2}
        v_add_u32 v1, {sA}, v1
        """)
        e.wait_vm("b2u")
        for nbl in range(2):
            for ii in range(2):
                r = 20 + 4 * nbl + 2 * ii
                e.lg(f"ds_read_b64_tr_b16 v[{r}:{r+1}], v1 offset:{512*ii + 64*nbl}", "b2r")

    def tag_masks(self, dst, t0, t1, sgn):
        e = self.e
        L = f"v{VL}"
        e(f"""
        s_and_b32 {sA}, {sT}, 63
        s_lshr_b32 {sB}, {sT}, 6
        s_and_b32 {sB}, {sB}, 62
        s_and_b32 {sC}, {sT}, 1
        s_or_b32 {sB}, {sB}, {sC}
        s_lshl_b32 {sB}, {sB}, 8
        s_or_b32 {sA}, {sA}, {sB}
        v_lshrrev_b32 v{t0}, 5, {L}
        v_lshlrev_b32 v{t0}, 3, v{t0}
        v_lshrrev_b32 v{t0}, v{t0}, {sA}
        """)
        for i, d in ((0, 0), (1, 2), (2, 3)):
            if i:
                e(f"v_lshrrev_b32 v{t0}, 2, v{t0}")
            e(f"v_lshlrev_b32 v{t1}, 15, v{t0}")
            e(f"v_lshl_or_b32 v{t1}, v{t0}, 30, v{t1}")
            e(f"v_and_b32 v{dst+d}, {sgn}, v{t1}")
        e(f"v_xor_b32 v{dst+1}, {sgn}, v{dst}")

    def b2u_stores(self):
        e = self.e
        self.tag_masks(28, 2, 3, sSGN)
        e(f"s_add_u32 {sA}, {sB2D}, {B2S*1024}")
        e.wait_lg("b2r")
        for i in range(8):
            e(f"v_xor_b32 v{20+i}, v{28+i%4}, v{20+i}")
        e.vm(f"buffer_store_dwordx4 v[20:23], v{VLANE16}, {SRD_WS}, {sB2D} offen sc1", "b2st")
        e.vm(f"buffer_store_dwordx4 v[24:27], v{VLANE16}, {SRD_WS}, {sA} offen sc1", "b2st")

    def cs_dmas(self):
        out = []
        for i in range(8):
            pre = [f"s_add_u32 m0, {sCSM}, {1024*i}"]
            if i:
                pre.append(f"s_add_u32 {sCSO}, {sCSO}, {sCSP}")
            out.append((pre, (f"buffer_load_dwordx4 v{VCSO}, {SRD_CS}, {sCSO} offen lds", "cs")))
        return out

    def b2_publish(self):
        e = self.e
        assert "tag" in self.marks
        L = self.lab("nob2pub")
        e(f"s_cmp_eq_u32 {sW}, 0")
        e(f"s_cbranch_scc0 {L}")
        e(f"s_lshl_b32 {sH0}, {sG2}, 3")
        e(f"s_add_u32 {sH0}, {sH0}, {WS_B2FLAG}")
        e(f"v_mov_b32 v{VT0+1}, {sH0}")
        self.oob_select(VT0 + 1, VT0 + 1, 1, mask=HM0)
        e(f"v_mov_b32 v{VT0+2}, {sT}")
        e(f"v_mov_b32 v{VT0+3}, {sNT}")
        e(f"buffer_store_dwordx2 v[{VT0+2}:{VT0+3}], v{VT0+1}, {SRD_WS}, 0 offen sc1")
        e(f"{L}:")

    def rows_items(self):
        L = f"v{VL}"
        X = VROWS
        S0, Q0, S1, Q1 = 198, 199, 200, 201
        O, t1, t2, t3 = TB, 202, 203, 186
        it = [("wvm", "rows")]
        ops = [f"v_mov_b32 v{O}, 0x3f803f80"]
        for r in (S0, Q0, S1, Q1):
            ops.append(f"v_mov_b32 v{r}, 0")
        for k in range(4):
            ops.append(f"v_dot2c_f32_bf16 v{S0}, v{X+k}, v{O}")
            ops.append(f"v_dot2c_f32_bf16 v{Q0}, v{X+k}, v{X+k}")
            ops.append(f"v_dot2c_f32_bf16 v{S1}, v{X+4+k}, v{O}")
            ops.append(f"v_dot2c_f32_bf16 v{Q1}, v{X+4+k}, v{X+4+k}")
        ops += [f"s_lshr_b32 {sA}, {sROW}, 11",
                f"v_lshrrev_b32 v{t1}, 5, {L}",
                f"v_lshl_add_u32 v{t1}, v{t1}, 10, {sA}",
                f"v_lshlrev_b32 v{t1}, 4, v{t1}",
                f"v_permlane32_swap_b32 v{S0}, v{S1}",
                f"v_permlane32_swap_b32 v{Q0}, v{Q1}",
                f"v_add_u32 v{t1}, {WS_ROW}, v{t1}",
                f"v_and_b32 v{t2}, 31, {L}",
                f"v_add_f32 v{S0}, v{S0}, v{S1}",
                f"v_add_f32 v{Q0}, v{Q0}, v{Q1}",
                f"v_mov_b32 v{t3}, {OOB}",
                f"v_cmp_eq_u32 vcc, 0, v{t2}",
                f"v_permlane16_swap_b32 v{S0}, v{Q0}",
                f"v_cndmask_b32 v{t1}, v{t3}, v{t1}, vcc",
                f"v_mov_b32 v{O+3}, {sT}",
                f"v_add_f32 v{S0}, v{S0}, v{Q0}"]
        for rot in (8, 4, 2, 1):
            ops.append(f"v_add_f32_dpp v{S0}, v{S0}, v{S0} row_ror:{rot} row_mask:0xf bank_mask:0xf")
        ops += [f"v_mov_b32 v{Q0}, v{S0}",
                f"v_permlane16_swap_b32 v{S0}, v{Q0}",
                f"v_mul_f32 v{S0}, {hexf(-1.0/512)}, v{S0}",
                f"v_mul_f32 v{Q0}, {hexf(1.0/512)}, v{Q0}",
                f"v_fma_f32 v{Q0}, -v{S0}, v{S0}, v{Q0}",
                f"v_cvt_pk_bf16_f32 v{O}, v{S0}, v{S0}",
                f"v_max_f32 v{Q0}, 0, v{Q0}",
                f"v_and_b32 v{t2}, 0xffff0000, v{O}",
                f"v_add_f32 v{Q0}, {hexf(1e-5)}, v{Q0}",
                f"v_sub_f32 v{t2}, v{S0}, v{t2}",
                f"v_rsq_f32 v{O+2}, v{Q0}",
                f"v_cvt_pk_bf16_f32 v{O+1}, v{t2}, 0"]
        it += [("op", x) for x in ops]
        it.append(("vm", f"buffer_store_dwordx4 v[{O}:{O+3}], v{t1}, {SRD_WS}, 0 offen sc1", "rowst"))
        return it

    def cs_items(self):
        L = f"v{VL}"
        t1, t2, t3 = 186, 187, 188
        D = 192
        G = TB
        ops = [f"v_bfe_u32 v{t1}, {L}, 2, 2",
               f"v_lshrrev_b32 v{t2}, 4, {L}",
               f"v_lshl_add_u32 v{t1}, v{t2}, 2, v{t1}",
               f"v_bfe_u32 v{t2}, v{t1}, 1, 2",
               f"v_lshlrev_b32 v{t2}, 1, v{t2}",
               f"v_bfe_u32 v{t3}, {L}, 1, 1",
               f"s_lshl_b32 {sA}, {sW}, 1",
               f"v_or_b32 v{t3}, {sA}, v{t3}",
               f"v_xor_b32 v{t2}, v{t2}, v{t3}",
               f"v_lshlrev_b32 v{t2}, 4, v{t2}",
               f"v_lshl_add_u32 v{t1}, v{t1}, 7, v{t2}",
               f"v_and_b32 v{t2}, 1, {L}",
               f"v_lshl_add_u32 v{t1}, v{t2}, 3, v{t1}",
               f"v_add_u32 v{t1}, {AUX_CS}, v{t1}"]
        it = [("op", x) for x in ops]
        for i in range(4):
            it.append(("op", f"v_mov_b32 v{ONES+i}, 0x3f803f80"))
        for i in range(16):
            it.append(("lg", f"ds_read_b64_tr_b16 a[{CSA+2*i}:{CSA+2*i+1}], v{t1} offset:{2048*i}", ("cs", i // 2)))
        it.append(("op", f"v_lshl_add_u32 v{t2}, {L}, 4, {sCSG}"))
        it.append(("op", f"v_mov_b32 v{t3}, {OOB}"))
        it.append(("op", f"v_cmp_gt_u32 vcc, 16, {L}"))
        it.append(("op", f"v_cndmask_b32 v{t3}, v{t3}, v{t2}, vcc"))
        for m in range(8):
            d = D + 4 * (m & 1)
            c = "0" if m < 2 else f"v[{d}:{d+3}]"
            it.append(("wlg", ("cs", m)))
            it.append(("op", f"v_mfma_f32_16x16x32_bf16 v[{d}:{d+3}], v[{ONES}:{ONES+3}], a[{CSA+4*m}:{CSA+4*m+3}], {c}"))
        ops = [f"v_mov_b32 v{G+2}, {sNT}",
               f"v_mov_b32 v{G+3}, {sT}",
               f"v_add_f32 v{D}, v{D}, v{D+4}",
               f"v_cvt_pk_bf16_f32 v{D+1}, v{D}, v{D}",
               f"v_and_b32 v{D+1}, 0xffff0000, v{D+1}",
               f"v_sub_f32 v{D+2}, v{D}, v{D+1}",
               f"v_lshrrev_b32 v{G+1}, 16, v{D+1}",
               f"v_cvt_pk_bf16_f32 v{G}, v{D+1}, v{D+2}"]
        it += [("op", x) for x in ops]
        it.append(("vm", f"buffer_store_dwordx4 v[{G}:{G+3}], v{t3}, {SRD_WS}, 0 offen sc1", "colst"))
        return it

    def setup_items(self, f, *a):
        return split_items(remap_temps(self.capture(f, *a)))

    def phase1(self, role):
        e = self.e
        cfg = self.cfg
        e(f"L_{role}:")
        e.vmq, e.lgq = [], []
        if role == "wide":
            e(f"s_add_u32 {sG2}, {sRT}, 240")
        self.p1_addr_dma(role)
        self.aux_addr(role)
        self.srds(role)
        self.aux_srds(role)
        self.stamp(1, "pro")
        rows = [(None, (f"buffer_load_dwordx4 v[{VROWS}:{VROWS+3}], v{VLANE16}, {SRD_X}, {sROW} offen", "rows")),
                (None, (f"buffer_load_dwordx4 v[{VROWS+4}:{VROWS+7}], v{VLANE16}, {SRD_X}, {sROW} offen offset:1024", "rows"))]
        for tok in cfg.pro_order:
            if tok == "E":
                self.load_epoch()
            elif tok == "b2u":
                if role != "wide":
                    self.b2u_dmas()
            elif tok == "rows":
                self.issue_now(rows)
            else:
                c = int(tok[1])
                for t in self.koff(role, c):
                    e(t)
                self.issue_now(self.dma_list(role, c))
        self.stamp(2, "pro")
        self.p1_addr_lds(role)
        self.marks = set()
        if role != "wide":
            self.b2u_reads()
            e.wait_vm("E")
            self.get_tag()
            self.marks.add("tag")
            self.b2u_stores()
        self.stamp(3, "pro")
        e.wait_vm(("c", 0))
        e("s_barrier")
        self.stamp(1)
        self.clk(1)
        self.stamp(4, "pro")
        for t in self.koff(role, 2):
            e(t)
        self.issue_now(self.dma_list(role, 2)[:3])
        for (t, tag) in self.reads(role, 0, 0):
            e.lg(t, tag)

        def mark(name):
            def f():
                self.marks.add(name)
                if cfg.verbose:
                    print(role, name, "at", self.cur_gk)
            return ("call", f, 0)
        self.mark_item = mark
        bg = []
        if role == "wide":
            bg += [("wvm", "E")] + split_items(self.capture(self.get_tag)) + [mark("tag")]
        bg += self.setup_items(self.gather_addr, role) + [mark("gaddr")]
        bg += self.setup_items(self.b2_setup) + [mark("b2s")]
        bg.append(("at", tuple(cfg.rows_at)))
        bg += self.rows_items()
        bg.append(mark("rows"))
        if role == "ffn":
            bg.append(("at", (4 * cfg.cs_it + 3, 0)))
            bg += self.cs_items()
            bg.append(mark("cs"))
        if role == "att":
            bg += self.setup_items(self.att_consts)
        else:
            bg += split_items(self.capture(self.tag_masks, FMASK, TB, TB + 1, f"0x{SGN:08x}"))
        bg += self.setup_items(self.p2_setup, role)
        bg.append(mark("setup"))
        gs = cfg.gather_step
        bg.append(("at", (28, 2)))
        bg.append(("wvm", "g"))
        bg.append(("call", lambda: self.check_gathers(role), 1))
        self.bg = bg

        b2 = self.b2_loads()
        vs = {}
        if "rows" not in cfg.pro_order:
            vs.setdefault(cfg.rows_g, []).extend(rows)
        if role == "ffn":
            cs = self.cs_dmas()
            for g in sorted(int(x) for x in cfg.cs_steps):
                c = cfg.cs_steps.get(g, cfg.cs_steps.get(str(g)))
                vs.setdefault(g, []).extend(cs[:c])
                cs = cs[c:]
            assert not cs
        pg, cit = cfg.b2_poll, cfg.b2_chk_it
        vs.setdefault(pg, []).append(
            (None, (f"buffer_load_dwordx2 v[{VFLAG}:{VFLAG+1}], v{VB2FA}, {SRD_WS}, 0 offen sc1", "b2f")))
        gi = self.gather_items(role)
        vs.setdefault(gs, []).extend(gi[:3])
        vs.setdefault(gs + 1, []).extend(gi[3:])
        steps = cfg.b2_steps or {15: 1, 16: 1, 17: 2, 18: 1, 19: 1, 20: 1, 21: 2, 22: 1, 23: 3, 24: 0, 25: 0, 26: 3, 27: 3,
                                 28: 3, 29: 3, 30: 3, 31: 3}
        first_b2 = 4 * cit + 3
        nb = 0
        for g in sorted(int(x) for x in steps):
            c = steps.get(g, steps.get(str(g)))
            assert g >= first_b2 or c == 0, (g, first_b2)
            vs.setdefault(g, []).extend(b2[nb:nb + c])
            nb += c
        self.b2_rest = b2[nb:]
        hooks = {("wait", cit): ["b2f"], ("post", cit): lambda: self.check_flag(VFLAG, VB2FA)}
        hooks.setdefault(("wait", cfg.b2_pub_it), []).append("b2st")
        assert cfg.b2_pub_it < cit
        hooks[("post", cfg.b2_pub_it)] = self.b2_publish
        hooks.setdefault(("wait", cfg.cs_it), []).append("cs")
        for it in range(8):
            if it == gs // 4:
                assert "setup" in self.marks, "set-up code must be finished before the gathers overwrite its temporaries"
            if it == pg // 4:
                assert "gaddr" in self.marks
            if it == cit:
                assert "b2s" in self.marks
            self.iteration(role, it, vs, hooks)
            if it in (1, 3, 5):
                self.stamp(2 + it // 2)
            if it < 4:
                self.stamp(5 + it, "pro")
        self.bg_flush()
        self.stamp(5)
        self.clk(3)
        self.stamp(1, "epi")
        if cfg.stop == "p1gemm":
            self.dump_acc(role)
            return
        if role == "att":
            self.att_epilogue()
        else:
            self.ffn_epilogue(role)
        self.stamp(6)

    def dump_acc(self, role):
        e = self.e
        e("s_nop 15")
        e(f"s_lshl_b32 {sA}, s2, 2")
        e(f"s_add_u32 {sA}, {sA}, {sW}")
        e(f"s_mul_i32 {sA}, {sA}, {112*256}")
        e(f"s_add_u32 {sA}, {sA}, {WS_DBG+0x100000}")
        e(f"v_lshlrev_b32 v{VT0}, 2, v{VL}")
        for r in range(112 if role == "wide" else 96):
            e(f"buffer_store_dword v{r}, v{VT0}, {SRD_WS}, {sA} offen")
            e(f"s_add_u32 {sA}, {sA}, 256")
        e("s_waitcnt vmcnt(0)")
        e("s_branch L_fin")


    def p2_setup(self, role):
        e = self.e
        L = f"v{VL}"
        if role == "att":
            e(f"s_lshl_b32 {sA}, {sRT}, 3")
            e(f"s_add_u32 {sA}, {sA}, {sCT}")
            e(f"s_lshl_b32 {sA}, {sA}, 2")
            e(f"s_add_u32 {sA}, {sA}, {sW}")
            e(f"s_lshl_b32 {sA}, {sA}, 3")
            e(f"s_add_u32 {sA}, {sA}, {WS_FLAG}")
            e(f"v_mov_b32 v1, {sA}")
            self.oob_select(VFST, 1, 1, tmp=7)
        else:
            e(f"v_mov_b32 v{VFST}, {OOB}")
        e(f"""
        s_lshl_b32 {sA}, {sJ2}, 5
        s_add_u32 {sB}, {sA}, 24
        s_mul_i32 {sB}, {sB}, 575
        s_lshr_b32 {sB}, {sB}, 15
        s_max_u32 {sA}, {sA}, 7
        s_sub_u32 {sA}, {sA}, 7
        s_mul_i32 {sA}, {sA}, 575
        s_lshr_b32 {sA}, {sA}, 15
        s_sub_u32 {sB}, {sB}, {sA}
        v_bfe_u32 v1, {L}, 3, 1
        v_mul_u32_u24 v1, {sB}, v1
        v_add_u32 v1, {sA}, v1
        v_bfe_u32 v2, {L}, 2, 1
        v_lshl_add_u32 v1, v1, 3, v2
        s_lshl_b32 {sA}, {sW}, 1
        v_add_u32 v1, {sA}, v1
        v_and_b32 v2, 3, {L}
        v_lshl_add_u32 v1, v1, 2, v2
        v_lshlrev_b32 v1, 3, v1
        v_add_u32 v{VFO}, {WS_FLAG}, v1
        """)
        e(f"""
        v_and_b32 v1, 31, {L}
        v_lshrrev_b32 v2, 5, {L}
        s_lshl_b32 {sA}, {sJ2}, 6
        s_add_u32 {sA}, {sA}, {sP}
        s_lshl_b32 {sA}, {sA}, 10
        s_lshl_b32 {sB}, {sN2}, 7
        s_add_u32 {sA}, {sA}, {sB}
        s_lshl_b32 {sB}, {sCH}, 6
        s_add_u32 {sA}, {sA}, {sB}
        v_lshlrev_b32 v3, 11, v1
        v_lshl_add_u32 v3, v2, 5, v3
        v_add_u32 v{VRES}, {sA}, v3
        s_lshl_b32 {sA}, {sP}, 10
        s_lshl_b32 {sB}, {sJ2}, 5
        s_add_u32 {sA}, {sA}, {sB}
        v_add_u32 v1, {sA}, v1
        v_lshlrev_b32 v1, 4, v1
        v_add_u32 v{VRS2}, {WS_ROW}, v1
        s_mul_i32 {sA}, {sP}, {NSTEP*1024}
        v_add_u32 v{VA0}, {sA}, v{VLANE16}
        s_xor_b32 {sA}, {sP}, 1
        s_mul_i32 {sA}, {sA}, {NSTEP*1024}
        v_add_u32 v{VA1}, {sA}, v{VLANE16}
        """)
        e(f"""
        s_lshl_b32 {sA}, {sJ2}, 1
        s_mul_i32 {sA}, {sA}, {NSTEP*1024}
        s_add_u32 {sA}, {sA}, {WS_ACT}
        s_mul_i32 {sB}, {sW}, 18
        s_add_u32 {sB}, {sB}, 32
        s_lshl_b32 {sC}, {sB}, 10
        s_add_u32 {sAHX[0]}, {sA}, {sC}
        s_add_u32 {sAHX[1]}, {sAHX[0]}, 4096
        s_add_u32 {sAHX[2]}, {sAHX[0]}, 8192
        s_add_u32 {sAHX[3]}, {sAHX[0]}, 12288
        s_add_u32 {sAHX[4]}, {sAHX[0]}, 16384
        s_lshl_b32 {sB}, {sW}, 2
        s_add_u32 {sB}, {sB}, 104
        s_lshl_b32 {sC}, {sB}, 10
        s_add_u32 {sAB}, {sA}, {sC}
        s_add_u32 {sC}, {sB}, 2
        s_min_u32 {sC}, {sC}, {NSTEP-1}
        s_lshl_b32 {sC}, {sC}, 10
        s_add_u32 {sX20}, {sA}, {sC}
        s_add_u32 {sC}, {sB}, 3
        s_min_u32 {sC}, {sC}, {NSTEP-1}
        s_lshl_b32 {sC}, {sC}, 10
        s_add_u32 {sX21}, {sA}, {sC}
        s_lshl_b32 {sC}, {sW}, 13
        s_add_u32 {sAOX[0]}, {sA}, {sC}
        s_add_u32 {sAOX[1]}, {sAOX[0]}, 4096
        """)

    def att_consts(self):
        e = self.e
        L = f"v{VL}"
        e(f"v_and_b32 v1, 15, {L}")
        e(f"v_lshrrev_b32 v2, 4, {L}")
        e(f"v_lshlrev_b32 v2, 2, v2")
        e(f"v_sub_u32 v1, v1, v2")
        e(f"v_mov_b32 v4, {hexf(-1e30)}")
        e(f"v_mov_b32 v{MASKC}, 0")
        e(f"v_mov_b32 v{MASKC+1}, 0")
        for r in range(4):
            e(f"v_subrev_u32 v3, {r}, v1")
            e(f"v_cmp_gt_u32 vcc, 8, v3")
            e(f"v_cmp_ge_i32 {sM}, -9, v3")
            e(f"v_cndmask_b32 v{BIASC+r}, v4, 0, vcc")
            e(f"v_cndmask_b32 v{BIASP+r}, v4, 0, {sM}")
            e(f"v_mov_b32 v5, {'0xffff' if r % 2 == 0 else '0xffff0000'}")
            e(f"v_cndmask_b32 v5, 0, v5, {sM}")
            e(f"v_or_b32 v{MASKC+r//2}, v{MASKC+r//2}, v5")
        for i in range(4):
            e(f"v_mov_b32 v{ONES+i}, 0x3f803f80")
        e(f"v_and_b32 v1, 31, {L}")
        e(f"v_lshrrev_b32 v2, 5, {L}")
        e(f"v_lshlrev_b32 v2, 9, v2")
        e(f"s_lshl_b32 {sA}, {sCT}, 2")
        e(f"s_lshl_b32 {sB}, {sCH}, 1")
        e(f"s_add_u32 {sA}, {sA}, {sB}")
        e(f"s_mul_i32 {sB}, {sP}, {NSTEP}")
        e(f"s_add_u32 {sA}, {sA}, {sB}")
        e(f"s_lshl_b32 {sA}, {sA}, 10")
        e(f"s_add_u32 {sA}, {sA}, {WS_ACT}")
        e(f"s_cmp_eq_u32 {sRT}, 0")
        e(f"s_cselect_b32 {sB}, 0, 7")
        e(f"v_mov_b32 v6, {OOB}")
        e(f"s_movk_i32 {sC}, 0x400")
        for tb in range(2):
            e(f"v_add_u32 v3, {32*tb}, v1")
            e(f"v_add_u32 v4, {sK0}, v3")
            e(f"v_cmp_le_u32 vcc, {sB}, v3")
            e(f"v_cmp_gt_u32 {sM}, {sC}, v4")
            e(f"s_and_b64 vcc, vcc, {sM}")
            e(f"v_lshrrev_b32 v5, 5, v4")
            e(f"v_mul_u32_u24 v5, {2*NSTEP*1024}, v5")
            e(f"v_and_b32 v4, 31, v4")
            e(f"v_lshl_add_u32 v4, v4, 4, v2")
            e(f"v_add3_u32 v4, v4, v5, {sA}")
            e(f"v_cndmask_b32 v{VOST+tb}, v6, v4, vcc")
        e(f"s_lshl_b32 {sA}, {sW}, 8")
        e(f"s_add_u32 {sA}, {sA}, {LDS_RV}")
        e(f"v_lshl_add_u32 v{VRVW}, {L}, 2, {sA}")
        e(f"v_lshrrev_b32 v2, 5, {L}")
        e(f"v_lshl_add_u32 v{VRVR}, v2, 4, {sA}")


    def corr_mfmas(self, role):
        out = []
        tiles = [(tb, blk) for blk in range(3) for tb in range(2)]
        if role == "wide":
            tiles.append((0, 3))
        for (tb, blk) in tiles:
            a = self.acc(tb, blk)
            R = f"v[{GROW+4*tb}:{GROW+4*tb+1}]"
            C = f"v[{GCOL+4*blk}:{GCOL+4*blk+1}]"
            if role == "att" and blk == 2:
                out.append(f"v_mfma_f32_32x32x8_bf16 v[{a}:{a+15}], {R}, {C}, v[{a}:{a+15}]")
            else:
                out.append(f"v_mfma_f32_32x32x8_bf16 v[{a}:{a+15}], {C}, {R}, v[{a}:{a+15}]")
        return out


    def b2_drip(self, n):
        e = self.e
        for _ in range(n):
            if not self.b2_rest:
                return
            pre, (t, tag) = self.b2_rest.pop(0)
            if pre:
                e(pre)
            e.vm(t, tag)


    def finish_epilogue(self):
        self.stamp(2, "epi")
        self.b2_drip(999)
        self.stamp(3, "epi")

    def ffn_epilogue(self, role):
        e = self.e
        for t in self.corr_mfmas(role):
            e(t)
        for tb in range(2):
            if role == "wide":
                e(f"s_xor_b32 {sA}, {sCH}, {tb}")
                e(f"s_lshl_b32 {sB}, {sRT}, 1")
                e(f"s_add_u32 {sA}, {sA}, {sB}")
            else:
                e(f"s_lshl_b32 {sA}, {sRT}, 1")
                e(f"s_add_u32 {sA}, {sA}, {tb}")
            e(f"s_lshl_b32 {sA}, {sA}, 1")
            e(f"s_add_u32 {sA}, {sA}, {sP}")
            e(f"s_mul_i32 {sA}, {sA}, {NSTEP}")
            e(f"s_mul_i32 {sB}, {sCT}, 12")
            e(f"s_add_u32 {sA}, {sA}, {sB}")
            e(f"s_add_u32 {sA}, {sA}, 32")
            dst = sE if tb == 0 else sF
            if role == "wide" and tb == 0:
                e(f"s_add_u32 {sD}, {sA}, 12")
                e(f"s_lshl_b32 {sD}, {sD}, 10")
                e(f"s_add_u32 {sD}, {sD}, {WS_ACT}")
            e(f"s_lshl_b32 {sB}, {sCH}, 1")
            e(f"s_add_u32 {sA}, {sA}, {sB}")
            e(f"s_lshl_b32 {sA}, {sA}, 10")
            e(f"s_add_u32 {dst}, {sA}, {WS_ACT}")
        tiles = [(tb, blk) for blk in range(3) for tb in range(2)]
        if role == "wide":
            tiles.append((0, 3))
        T = 112
        k = 0
        for (tb, blk) in tiles:
            a = self.acc(tb, blk)
            so = sD if blk == 3 else (sE if tb == 0 else sF)
            for half in range(2):
                r = T + 4 * (k % 8)
                k += 1
                for i in range(4):
                    e(f"v_cvt_pk_bf16_f32 v{r+i}, v{a+8*half+2*i}, v{a+8*half+2*i+1}")
                for i in range(4):
                    e(f"v_pk_max_i16 v{r+i}, v{r+i}, 0")
                for i in range(4):
                    e(f"v_or_b32 v{r+i}, v{FMASK+i}, v{r+i}")
                e.vm(f"buffer_store_dwordx4 v[{r}:{r+3}], v{VLANE16}, {SRD_WS}, {so} offen offset:{1024*half} sc1", "st")
            if blk < 2:
                e(f"s_add_u32 {so}, {so}, 4096")
        self.finish_epilogue()


    def drip_hook(self, line):
        t = line.strip()
        if t.endswith(":") or t.startswith(("s_cmp", "s_waitcnt")):
            return
        if t.startswith("v_mfma"):
            c = 12
        elif t.startswith(("v_exp", "v_rcp", "v_pk_")):
            c = 8
        else:
            c = 5
        self.drip_acc += c
        if self.drip_acc >= self.cfg.att_drip:
            self.drip_acc = 0
            self.b2_drip(1)

    def att_epilogue(self):
        e = self.e
        QP, KP, VH = 96, 112, 128
        RV = 144
        RQ, CQ, C64, R64 = 252, 176, 180, 206
        R = [GROW + 2, GROW + 6]
        corr = self.corr_mfmas("att")
        self.drip_acc = 0
        e.hook = self.drip_hook
        e(f"s_mov_b32 s62, 0")
        e(f"s_mov_b32 s63, -1")
        e(f"v_cndmask_b32 v{R64}, v{R[0]}, v{R[1]}, {sM}")
        e(corr[0])
        e.lg(f"ds_write_b32 v{VRVW}, v{R64}", "rvw")
        e(corr[1])
        for tb in range(2):
            for a in range(4):
                e.lg(f"ds_read_b128 v[{RV+16*tb+4*a}:{RV+16*tb+4*a+3}], v{VRVR} offset:{128*tb+32*a}", ("rv", tb))
            e(corr[2 + tb])
        e(f"v_mul_f32 v{C64}, {hexf(0.25*LOG2E)}, v{R64}")
        for tb in range(2):
            e(f"v_mov_b32 v{RQ+2*tb}, v{R[tb]}")
            e(f"v_mov_b32 v{RQ+2*tb+1}, v{R[tb]}")
        e(corr[4])
        e(corr[5])
        for tb in range(2):
            e(f"v_permlane16_swap_b32 v{RQ+2*tb}, v{RQ+2*tb+1}")
        for b in range(4):
            e(f"v_mul_f32 v{CQ+b}, {hexf(0.25*LOG2E)}, v{RQ+b}")
        for tb in range(2):
            for hd in range(2):
                a, n = self.acc(tb, 0) + 8 * hd, QP + 8 * tb + 4 * hd
                for i in range(4):
                    e(f"v_cvt_pk_bf16_f32 v{n+i}, v{a+2*i}, v{a+2*i+1}")
        for tb in range(2):
            for hd in range(2):
                n = QP + 8 * tb + 4 * hd
                e(f"v_permlane16_swap_b32 v{n}, v{n+2}")
                e(f"v_permlane16_swap_b32 v{n+1}, v{n+3}")
        for tb in range(2):
            a = self.acc(tb, 1)
            for i in range(8):
                e(f"v_pk_mul_f32 v[{a+2*i}:{a+2*i+1}], v[{a+2*i}:{a+2*i+1}], v[{R[tb]}:{R[tb]+1}] op_sel_hi:[1,0]")
        for tb in range(2):
            for hd in range(2):
                a, n = self.acc(tb, 1) + 8 * hd, KP + 8 * tb + 4 * hd
                for i in range(4):
                    e(f"v_cvt_pk_bf16_f32 v{n+i}, v{a+2*i}, v{a+2*i+1}")
        for tb in range(2):
            for hd in range(2):
                n = KP + 8 * tb + 4 * hd
                e(f"v_permlane16_swap_b32 v{n}, v{n+2}")
                e(f"v_permlane16_swap_b32 v{n+1}, v{n+3}")

        def op2(base, hd, blk):
            r = base + 8 * (blk >> 1) + 4 * hd + 2 * (blk & 1)
            return f"v[{r}:{r+1}]"

        def SC(hd, blk):
            return 28 * hd + 4 * blk

        def SP(hd, blk):
            return 28 * hd + 16 + 4 * (blk - 1)
        smf = []
        for hd in range(2):
            for blk in range(4):
                d = SC(hd, blk)
                smf.append(f"v_mfma_f32_16x16x16_bf16 v[{d}:{d+3}], {op2(KP,hd,blk)}, {op2(QP,hd,blk)}, v[{BIASC}:{BIASC+3}]")
                if blk:
                    d = SP(hd, blk)
                    smf.append(f"v_mfma_f32_16x16x16_bf16 v[{d}:{d+3}], {op2(KP,hd,blk-1)}, {op2(QP,hd,blk)}, v[{BIASP}:{BIASP+3}]")
        vops = []
        for tb in range(2):
            a = self.acc(tb, 2)
            for i in range(8):
                vops.append((("rv", tb), f"v_pk_mul_f32 v[{a+2*i}:{a+2*i+1}], v[{a+2*i}:{a+2*i+1}], v[{RV+16*tb+2*i}:{RV+16*tb+2*i+1}]"))
        for tb in range(2):
            for eb in range(2):
                blk = 2 * tb + eb
                a = self.acc(tb, 2) + 8 * eb
                X, Y = VH + 2 * blk, VH + 8 + 2 * blk
                vops.append((None, f"v_cvt_pk_bf16_f32 v{X}, v{a}, v{a+1}"))
                vops.append((None, f"v_cvt_pk_bf16_f32 v{X+1}, v{a+2}, v{a+3}"))
                vops.append((None, f"v_cvt_pk_bf16_f32 v{Y}, v{a+4}, v{a+5}"))
                vops.append((None, f"v_cvt_pk_bf16_f32 v{Y+1}, v{a+6}, v{a+7}"))
        for blk in range(4):
            X, Y = VH + 2 * blk, VH + 8 + 2 * blk
            vops.append((None, f"v_permlane32_swap_b32 v{X}, v{Y}"))
            vops.append((None, f"v_permlane32_swap_b32 v{X+1}, v{Y+1}"))
        for blk in range(4):
            X, Y = VH + 2 * blk, VH + 8 + 2 * blk
            vops.append((None, f"v_permlane16_swap_b32 v{X}, v{Y}"))
            vops.append((None, f"v_permlane16_swap_b32 v{X+1}, v{Y+1}"))
        vi = 0
        for m in smf:
            e(m)
            for _ in range(2):
                if vi < len(vops):
                    t, o = vops[vi]
                    if t:
                        e.wait_lg(t)
                    e(o)
                    vi += 1
        while vi < len(vops):
            t, o = vops[vi]
            if t:
                e.wait_lg(t)
            e(o)
            vi += 1
        MX = 64
        for hd in range(2):
            for blk in range(1, 4):
                for r in range(4):
                    e(f"v_max_f32 v{SC(hd,blk)+r}, v{SC(hd,blk)+r}, v{SP(hd,blk)+r}")
        for hd in range(2):
            for blk in range(4):
                s = SC(hd, blk)
                e(f"v_max3_f32 v{MX+4*hd+blk}, v{s}, v{s+1}, v{s+2}")
        for hd in range(2):
            for blk in range(4):
                s = SC(hd, blk)
                e(f"v_max_f32 v{MX+4*hd+blk}, v{MX+4*hd+blk}, v{s+3}")
        for hd in range(2):
            m = MX + 4 * hd
            e(f"v_permlane16_swap_b32 v{m}, v{m+1}")
            e(f"v_permlane16_swap_b32 v{m+2}, v{m+3}")
        for hd in range(2):
            m = MX + 4 * hd
            e(f"v_max_f32 v{m}, v{m}, v{m+1}")
            e(f"v_max_f32 v{m+2}, v{m+2}, v{m+3}")
        for hd in range(2):
            m = MX + 4 * hd
            e(f"v_permlane32_swap_b32 v{m}, v{m+2}")
        for hd in range(2):
            m = MX + 4 * hd
            e(f"v_max_f32 v{m}, v{m}, v{m+2}")
        for hd in range(2):
            m = MX + 4 * hd
            e(f"v_mul_f32 v{m}, -v{m}, v{C64}")
        for hd in range(2):
            m = MX + 4 * hd
            e(f"v_mov_b32 v{m+2}, v{m}")
        for hd in range(2):
            m = MX + 4 * hd
            e(f"v_permlane32_swap_b32 v{m}, v{m+2}")
        for hd in range(2):
            m = MX + 4 * hd
            e(f"v_mov_b32 v{m+1}, v{m}")
            e(f"v_mov_b32 v{m+3}, v{m+2}")
        for hd in range(2):
            m = MX + 4 * hd
            e(f"v_permlane16_swap_b32 v{m}, v{m+1}")
            e(f"v_permlane16_swap_b32 v{m+2}, v{m+3}")
        def PT(hd, blk):
            return 96 + 4 * (4 * hd + blk)

        def OO(hd, blk):
            return 144 + 4 * (4 * hd + blk)

        for hd in range(2):
            for blk in range(4):
                s = SC(hd, blk)
                for r in range(4):
                    e(f"v_fma_f32 v{s+r}, v{s+r}, v{CQ+blk}, v{MX+4*hd+blk}")
        for hd in range(2):
            for blk in range(4):
                s = SC(hd, blk)
                for r in range(4):
                    e(f"v_exp_f32 v{s+r}, v{s+r}")
        for hd in range(2):
            for blk in range(4):
                s, p = SC(hd, blk), PT(hd, blk)
                e(f"v_cvt_pk_bf16_f32 v{p+2}, v{s}, v{s+1}")
                e(f"v_cvt_pk_bf16_f32 v{p+3}, v{s+2}, v{s+3}")
        for hd in range(2):
            for blk in range(1, 4):
                p = PT(hd, blk)
                e(f"v_and_b32 v{p}, v{p+2}, v{MASKC}")
                e(f"v_and_b32 v{p+1}, v{p+3}, v{MASKC+1}")
            for blk in range(1, 4):
                p = PT(hd, blk)
                e(f"v_xor_b32 v{p+2}, v{p+2}, v{p}")
                e(f"v_xor_b32 v{p+3}, v{p+3}, v{p+1}")
        def SUMR(hd, blk):
            return 4 * (4 * hd + blk)
        for hd in range(2):
            for blk in range(4):
                p, o, s = PT(hd, blk), OO(hd, blk), SUMR(hd, blk)
                vh = VH + 8 * hd
                if blk == 0:
                    e(f"v_mfma_f32_16x16x16_bf16 v[{s}:{s+3}], v[{ONES}:{ONES+1}], v[{p+2}:{p+3}], 0")
                    e(f"v_mfma_f32_16x16x16_bf16 v[{o}:{o+3}], v[{vh}:{vh+1}], v[{p+2}:{p+3}], 0")
                else:
                    e(f"v_mfma_f32_16x16x32_bf16 v[{s}:{s+3}], v[{ONES}:{ONES+3}], v[{p}:{p+3}], 0")
                    e(f"v_mfma_f32_16x16x32_bf16 v[{o}:{o+3}], v[{vh+2*(blk-1)}:{vh+2*(blk-1)+3}], v[{p}:{p+3}], 0")
        for hd in range(2):
            for blk in range(4):
                s = SUMR(hd, blk)
                e(f"v_mul_f32 v{s}, v{s}, v{RQ+blk}")
        for hd in range(2):
            for blk in range(4):
                s = SUMR(hd, blk)
                e(f"v_rcp_f32 v{s}, v{s}")
        for hd in range(2):
            for blk in range(4):
                s, o = SUMR(hd, blk), OO(hd, blk)
                e(f"v_pk_mul_f32 v[{o}:{o+1}], v[{o}:{o+1}], v[{s}:{s+1}] op_sel_hi:[1,0]")
                e(f"v_pk_mul_f32 v[{o+2}:{o+3}], v[{o+2}:{o+3}], v[{s}:{s+1}] op_sel_hi:[1,0]")
        OP = 64
        for hd in range(2):
            for blk in range(4):
                o = OO(hd, blk)
                n = OP + 4 * (2 * hd + (blk >> 1)) + 2 * (blk & 1)
                e(f"v_cvt_pk_bf16_f32 v{n}, v{o}, v{o+1}")
                e(f"v_cvt_pk_bf16_f32 v{n+1}, v{o+2}, v{o+3}")
        for hd in range(2):
            for tb in range(2):
                n = OP + 4 * (2 * hd + tb)
                e(f"v_permlane16_swap_b32 v{n}, v{n+2}")
                e(f"v_permlane16_swap_b32 v{n+1}, v{n+3}")
        e.hook = None
        for hd in range(2):
            for tb in range(2):
                n = OP + 4 * (2 * hd + tb)
                e.vm(f"buffer_store_dwordx4 v[{n}:{n+3}], v{VOST+tb}, {SRD_WS}, 0 offen offset:{1024*hd} sc1", "st")
        self.finish_epilogue()


    def phase2(self):
        e = self.e
        cfg = self.cfg
        RD_ = cfg.ring_d
        NT = 22
        e("L_p2:")
        e.lgq = []
        e.vmq = ["st"]
        if cfg.stop == "p1":
            e("s_waitcnt vmcnt(0)")
            e(f"v_mov_b32 v{VT0}, {sT}")
            e(f"v_mov_b32 v{VT0+1}, {sNT}")
            e(f"buffer_store_dwordx2 v[{VT0}:{VT0+1}], v{VFST}, {SRD_WS}, 0 offen sc1")
            e("s_branch L_fin")
            return
        self.stamp(7)
        self.clk(5)

        def loads(i):
            r = RING + 8 * (i % RD_)
            if i < 18:
                so, off = sAHX[i // 4], (i % 4) * 1024
            elif i < 20:
                so, off = sAB, (i - 18) * 1024
            elif i < 22:
                so, off = (sX20 if i == 20 else sX21), 0
            else:
                d = i - 22
                so, off = sAOX[d // 4], (d % 4) * 1024
            return [f"buffer_load_dwordx4 v[{r}:{r+3}], v{VA0}, {SRD_WS}, {so} offen offset:{off} sc1",
                    f"buffer_load_dwordx4 v[{r+4}:{r+7}], v{VA1}, {SRD_WS}, {so} offen offset:{off} sc1"]

        st = {"next": 0}

        log = []

        def vm(t, tag):
            e.vm(t, tag)
            log.append((t, tag))

        def after(tag):
            idx = [k for k, (_, g) in enumerate(log) if g == tag]
            return log[idx[-1] + 1:] if idx else list(log)

        def wait(tag):
            e(f"s_waitcnt vmcnt({min(len(after(tag)), 63)})")

        def ring_wait(i):
            wait(("a", i))

        def issue_upto(n):
            while st["next"] <= min(n, 29):
                for t in loads(st["next"]):
                    vm(t, ("a", st["next"]))
                st["next"] += 1

        U = PTMP

        def check_ops(i):
            r = RING + 8 * (i % RD_)
            a = [f"v_bitop3_b32 v{U+k}, v{r+k}, v{r+4+k}, v{PMASK+k} bitop3:0x7e" for k in range(4)]
            b = [f"v_or3_b32 v{U}, v{U}, v{U+1}, v{U+2}",
                 f"v_bitop3_b32 v{U}, v{U}, v{U+3}, {sSGN} bitop3:0xa8",
                 f"v_cmp_ne_u32 {HM0}, 0, v{U}"]
            return a, b, f"s_cmp_lg_u64 {HM0}, 0"
        slow = []

        def branch_slow(i):
            Ls, Lb = self.lab("slow"), self.lab("back")
            e(f"s_cbranch_scc1 {Ls}")
            e(f"{Lb}:")
            slow.append((i, [t for (t, _) in after(("a", i))], Ls, Lb))

        issue_upto(RD_ - 1)
        e(f"s_mov_b32 {sSGN}, 0x{SGN:08x}")
        e(f"s_mov_b32 {sSPIN}, 0")
        self.tag_masks(PMASK, U, U + 1, sSGN)
        e(f"v_mov_b32 v{VT0}, {sT}")
        e(f"v_mov_b32 v{VT0+1}, {sNT}")
        ring_wait(-1)
        vm(f"buffer_store_dwordx2 v[{VT0}:{VT0+1}], v{VFST}, {SRD_WS}, 0 offen sc1", "fst")
        self.stamp(4, "epi")
        vm(f"buffer_load_dwordx4 v[{RES}:{RES+3}], v{VRES}, {SRD_X}, 0 offen", "res")
        vm(f"buffer_load_dwordx4 v[{RES+4}:{RES+7}], v{VRES}, {SRD_X}, 0 offen offset:16", "res")
        vm(f"buffer_load_dwordx4 v[{G2}:{G2+3}], v{VRS2}, {SRD_WS}, 0 offen sc1", "g2")
        ring_wait(0)
        self.stamp(5, "epi")
        a, b, c = check_ops(0)
        for t in a + b + [c]:
            e(t)
        branch_slow(0)
        self.stamp(8, "epi")
        OF_ISSUE, OF_CHECK = cfg.of_issue, cfg.of_check
        of_ok = False
        for i in range(30):
            if i == OF_ISSUE:
                vm(f"buffer_load_dwordx2 v[{VFLAG}:{VFLAG+1}], v{VFO}, {SRD_WS}, 0 offen sc1", "of")
            if i == OF_CHECK:
                wait("of")
                if not (cfg.x_nowait & 16):
                    self.check_flag(VFLAG, VFO)
                of_ok = True
                issue_upto(i + RD_ - 1)
                self.stamp(6, "epi")
            if i == 24:
                self.epoch_loads()
            if i in (0, 4, 8, 12, 16, 20, 24, 28):
                self.stamp(1 + i // 4, "p2")
            r = RING + 8 * (i % RD_)
            chk = i + 1 < NT
            ca, cb, cc = check_ops(i + 1) if chk else ([], [], None)
            k = 0
            for cs in range(2):
                for ps in range(2):
                    a = 16 * (2 * cs + ps)
                    c = "0" if i == 0 else f"v[{a}:{a+15}]"
                    e(f"v_mfma_f32_32x32x16_bf16 v[{a}:{a+15}], a[{8*i+4*cs}:{8*i+4*cs+3}], v[{r+4*ps}:{r+4*ps+3}], {c}")
                    if k == 0 and chk:
                        ring_wait(i + 1)
                        for t in ca:
                            e(t)
                    if k == 1:
                        for t in cb:
                            e(t)
                    if k == 2 and chk:
                        e(cc)
                    k += 1
            if chk:
                branch_slow(i + 1)
            issue_upto(i + RD_ if of_ok else min(i + RD_, NT - 1))
            if not chk and i + 1 < 30:
                ring_wait(i + 1)
        self.slow_paths = (slow, loads, check_ops)
        self.stamp(8)
        self.clk(7)
        self.stamp(9, "p2")
        WA = RING
        for sl in range(1, 4):
            e(f"s_xor_b32 {sA}, {sW}, {sl}")
            e(f"s_mul_i32 {sA}, {sA}, {3*4096}")
            e(f"s_add_u32 {sA}, {sA}, {(sl-1)*4096}")
            e(f"v_add_u32 v{WA+sl}, {sA}, v{VLANE16}")
        e(f"s_mul_i32 {sA}, {sW}, {3*4096}")
        e(f"v_add_u32 v{WA}, {sA}, v{VLANE16}")
        for sl in range(1, 4):
            for q in range(4):
                a = 16 * sl + 4 * q
                e.lg(f"ds_write_b128 v{WA+sl}, v[{a}:{a+3}] offset:{1024*q}", "rw")
        RX = 80
        e.wait_vm("res")
        for i in range(8):
            e(f"v_lshlrev_b32 v{RX+2*i}, 16, v{RES+i}")
            e(f"v_and_b32 v{RX+2*i+1}, 0xffff0000, v{RES+i}")
        Lc, Lok = self.lab("g2chk"), self.lab("g2ok")
        e.wait_vm("g2")
        e(f"s_mov_b32 {sSPIN}, 0")
        e(f"{Lc}:")
        e(f"v_cmp_eq_u32 vcc, {sT}, v{G2+3}")
        e(f"s_cmp_eq_u64 vcc, exec")
        e(f"s_cbranch_scc1 {Lok}")
        e(f"s_add_u32 {sSPIN}, {sSPIN}, 1")
        e(f"s_cmp_ge_u32 {sSPIN}, {SPIN_MAX}")
        e(f"s_cbranch_scc1 {Lok}")
        e(f"buffer_load_dwordx4 v[{G2}:{G2+3}], v{VRS2}, {SRD_WS}, 0 offen sc1")
        e("s_waitcnt vmcnt(0)")
        e(f"s_branch {Lc}")
        e(f"{Lok}:")
        e.wait_lg_all()
        e("s_barrier")
        RD = 96
        for sl in range(1, 4):
            for q in range(4):
                r = RD + 16 * (sl - 1) + 4 * q
                e.lg(f"ds_read_b128 v[{r}:{r+3}], v{WA} offset:{4096*(sl-1)+1024*q}", ("rr", sl))
        for sl in range(1, 4):
            e.wait_lg(("rr", sl))
            for i in range(8):
                r = RD + 16 * (sl - 1) + 2 * i
                e(f"v_pk_add_f32 v[{2*i}:{2*i+1}], v[{2*i}:{2*i+1}], v[{r}:{r+1}]")
        for i in range(8):
            e(f"v_pk_fma_f32 v[{2*i}:{2*i+1}], v[{2*i}:{2*i+1}], v[{G2+2}:{G2+3}], v[{RX+2*i}:{RX+2*i+1}] op_sel_hi:[1,0,1]")
        for i in range(8):
            e(f"v_cvt_pk_bf16_f32 v{16+i}, v{2*i}, v{2*i+1}")
        e.vm(f"buffer_store_dwordx4 v[16:19], v{VRES}, {SRD_OUT}, 0 offen", "out")
        e.vm(f"buffer_store_dwordx4 v[20:23], v{VRES}, {SRD_OUT}, 0 offen offset:16", "out")
        self.stamp(9)
        self.stamp(9, "clk")
        self.stamp(9, "epi")
        self.epoch_update()

    EPR = 216

    def epoch_loads(self):
        e = self.e
        L = self.lab("noepl")
        R = self.EPR
        e(f"v_lshlrev_b32 v{R+8}, 3, v{VL}")
        e(f"s_or_b32 {sA}, s2, {sW}")
        e(f"v_add_u32 v{R+8}, {WS_B2FLAG}, v{R+8}")
        e(f"s_cmp_eq_u32 {sA}, 0")
        e(f"s_cbranch_scc0 {L}")
        for q in range(4):
            e(f"buffer_load_dwordx2 v[{R+2*q}:{R+2*q+1}], v{R+8}, {SRD_WS}, 0 offen offset:{512*q} sc1")
        e(f"{L}:")

    def epoch_update(self):
        e = self.e
        R = self.EPR
        Lskip = self.lab("noepoch")
        e(f"s_or_b32 {sA}, s2, {sW}")
        e(f"s_cmp_eq_u32 {sA}, 0")
        e(f"s_cbranch_scc0 {Lskip}")
        Lc, Lok = self.lab("echk"), self.lab("eok")
        e(f"s_mov_b32 {sSPIN}, 0")
        e("s_waitcnt vmcnt(2)")
        e(f"{Lc}:")
        e(f"s_mov_b64 {sM2}, exec")
        for q in range(4):
            e(f"v_cmp_eq_u32 vcc, {sT}, v{R+2*q}")
            e(f"v_cmp_eq_u32 {sM}, {sNT}, v{R+1+2*q}")
            e(f"s_and_b64 {sM2}, {sM2}, vcc")
            e(f"s_and_b64 {sM2}, {sM2}, {sM}")
        e(f"s_cmp_eq_u64 {sM2}, exec")
        e(f"s_cbranch_scc1 {Lok}")
        e(f"s_add_u32 {sSPIN}, {sSPIN}, 1")
        e(f"s_cmp_ge_u32 {sSPIN}, {SPIN_MAX}")
        e(f"s_cbranch_scc1 {Lok}")
        for q in range(4):
            e(f"buffer_load_dwordx2 v[{R+2*q}:{R+2*q+1}], v{R+8}, {SRD_WS}, 0 offen offset:{512*q} sc1")
        e("s_waitcnt vmcnt(0)")
        e(f"s_branch {Lc}")
        e(f"{Lok}:")
        e(f"v_mov_b32 v33, 0")
        self.oob_select(33, 33, 1)
        e(f"v_mov_b32 v34, {sT}")
        e(f"buffer_store_dword v34, v33, {SRD_WS}, 0 offen sc1")
        e(f"{Lskip}:")

    def build(self):
        e = self.e
        self.entry()
        for role in ("att", "ffn", "wide"):
            self.phase1(role)
            e("s_branch L_p2")
        self.phase2()
        e("L_fin:")
        self.dump_stamps()
        e("L_end:")
        e("s_endpgm")
        if self.cfg.stop != "p1":
            slow, loads, check_ops = self.slow_paths
            for (i, pending, Ls, Lb) in slow:
                Lr = self.lab("refresh")
                e(f"{Ls}:")
                e(f"s_add_u32 {sSPIN}, {sSPIN}, 1")
                e(f"s_cmp_ge_u32 {sSPIN}, {SPIN_MAX}")
                e(f"s_cbranch_scc1 {Lr}")
                for t in loads(i):
                    e(t)
                e("s_waitcnt vmcnt(0)")
                a, b, c = check_ops(i)
                for t in a + b + [c]:
                    e(t)
                e(f"s_cbranch_scc1 {Ls}")
                e(f"{Lr}:")
                for t in pending:
                    e(t)
                e(f"s_branch {Lb}")
        lines = fix_hazards(e.lines, verbose=True)
        hdr = f"""; LayerNorm -> (dilated sliding-window attention | ReLU FFN) -> projection + residual, one persistent launch
; @launch grid=(256,1,1) block=(256,1,1) lds=163840
.amdgcn_target "amdgcn-amd-amdhsa--gfx950"
.text
.globl {KNAME}
.p2align 8
.type {KNAME},@function
{KNAME}:
"""
        ftr = f"""
.section .rodata,"a"
.p2align 6
.amdhsa_kernel {KNAME}
  .amdhsa_next_free_vgpr 512
  .amdhsa_next_free_sgpr 102
  .amdhsa_accum_offset 256
  .amdhsa_group_segment_fixed_size 0
  .amdhsa_kernarg_size 72
  .amdhsa_user_sgpr_count 2
  .amdhsa_user_sgpr_kernarg_segment_ptr 1
  .amdhsa_system_sgpr_workgroup_id_x 1
.end_amdhsa_kernel
"""
        return hdr + "\n".join(lines) + "\n" + ftr


if __name__ == "__main__":
    cfg = Cfg()
    open(sys.argv[1] if len(sys.argv) > 1 else "k.s", "w").write(Gen(cfg).build())
```
